```python
import torch

def _softmax(x, axis=-1):
    return torch.softmax(x, dim=axis)
def _gelu(x):
    return torch.nn.functional.gelu(x, approximate="tanh")
def _silu(x):
    return torch.nn.functional.silu(x)
def _sigmoid(x):
    return torch.sigmoid(x)
def _layernorm(x, axis=-1, eps=1e-5):
    m = x.mean(dim=axis, keepdim=True)
    v = x.var(dim=axis, keepdim=True, unbiased=False)
    return (x - m) / torch.sqrt(v + eps)
def _scatter_add(tgt, idx, src, axis=0):
    return tgt.clone().index_add_(axis, idx, src)
def _segment_sum(src, seg, n):
    out = torch.zeros((n,) + src.shape[1:], dtype=src.dtype)
    return out.index_add_(0, seg, src)
def _pad(x, pw):
    flat = tuple(v for pair in reversed(pw) for v in pair)
    return torch.nn.functional.pad(x, flat)

kernel_name = 'interleave_layers__grouped_kv_mqa__glu_gated_swiglu__prompt'

def setup_inputs():

    _w = (lambda a: (lambda t: t.to(torch.bfloat16) if t.is_floating_point() else t)(torch.as_tensor(a)))
    def _A_setup():
        B, S, D, H = 1, 2048, 512, 32
        Dh = D // H
        return {
            "x": _w((lambda *s: torch.randn(*s, dtype=torch.bfloat16) * 0.05)(B, S, D)),
            "wq": _w((lambda *s: torch.randn(*s, dtype=torch.bfloat16) * 0.05)(D, H * Dh)),
            "wk": _w((lambda *s: torch.randn(*s, dtype=torch.bfloat16) * 0.05)(D, Dh)),
            "wv": _w((lambda *s: torch.randn(*s, dtype=torch.bfloat16) * 0.05)(D, Dh)),
            "wo": _w((lambda *s: torch.randn(*s, dtype=torch.bfloat16) * 0.05)(H * Dh, D)),
        }
    _A_in = _A_setup()

    def _B_setup():
        B, S, D, F = 1, 2048, 512, 1792
        return {
            "x": _w((lambda *s: torch.randn(*s, dtype=torch.bfloat16) * 0.05)(B, S, D)),
            "w1": _w((lambda *s: torch.randn(*s, dtype=torch.bfloat16) * 0.4)(D, F) * (2.0 / D) ** 0.5),
            "w3": _w((lambda *s: torch.randn(*s, dtype=torch.bfloat16) * 0.4)(D, F) * (2.0 / D) ** 0.5),
            "w2": _w((lambda *s: torch.randn(*s, dtype=torch.bfloat16) * 0.4)(F, D) * (2.0 / F) ** 0.5),
        }
    _B_in = _B_setup()

    return {
        "A_x": _A_in["x"],
        "A_wq": _A_in["wq"],
        "A_wk": _A_in["wk"],
        "A_wv": _A_in["wv"],
        "A_wo": _A_in["wo"],
        "B_x": _B_in["x"],
        "B_w1": _B_in["w1"],
        "B_w3": _B_in["w3"],
        "B_w2": _B_in["w2"],
    }

def reference(A_x, A_wq, A_wk, A_wv, A_wo, B_x, B_w1, B_w3, B_w2):
    def _A_ref(x, wq, wk, wv, wo):
        B, S, D = x.shape
        H = 32
        Dh = D // H
        q = (lambda x, *d: x.permute(*d))((x @ wq).reshape(B, S, H, Dh), 0, 2, 1, 3)
        k = x @ wk
        v = x @ wv
        scores = torch.einsum("bhqd,bkd->bhqk", q, k) * (Dh ** -0.5)
        p = _softmax(scores, axis=-1)
        o = torch.einsum("bhqk,bkd->bhqd", p, v)
        return (lambda x, *d: x.permute(*d))(o, 0, 2, 1, 3).reshape(B, S, H * Dh) @ wo

    def _B_ref(x, w1, w3, w2):
        gate = torch.einsum("bsd,df->bsf", x, w1)
        up = torch.einsum("bsd,df->bsf", x, w3)
        h = _silu(gate) * up
        out = torch.einsum("bsf,fd->bsd", h, w2)
        return out

    x = A_x
    x = x + _A_ref(_layernorm(x, axis=-1), A_wq, A_wk, A_wv, A_wo)
    x = x + _B_ref(_layernorm(x, axis=-1), B_w1, B_w3, B_w2)
    x = x + _A_ref(_layernorm(x, axis=-1), A_wq, A_wk, A_wv, A_wo)
    x = x + _B_ref(_layernorm(x, axis=-1), B_w1, B_w3, B_w2)
    return x
```

```python
class Asm:
    def __init__(self):
        self.lines = []
        self.vm = []
        self.uid = 0
    def e(self, s):
        self.lines.append("  " + s)
    def c(self, s):
        self.lines.append("  ; " + s)
    def label(self, s):
        self.lines.append(s + ":")
    def raw(self, s):
        self.lines.append(s)
    def newlabel(self, p="L"):
        self.uid += 1
        return f"{p}_{self.uid}"
    def vm_reset(self):
        self.vm = []
    def vm_issue(self, tag, s):
        self.e(s)
        self.vm.append(tag)
        assert len(self.vm) <= 63, "too many outstanding vmem"
    def vm_count_after(self, tags):
        if not isinstance(tags, list):
            tags = [tags]
        idx = -1
        for i, t in enumerate(self.vm):
            if t in tags:
                idx = i
        if idx < 0:
            return None
        return len(self.vm) - 1 - idx
    def vm_wait(self, tags, extra=""):
        n = self.vm_count_after(tags)
        if n is None:
            if extra:
                self.e(f"s_waitcnt {extra}")
            return
        self.e(f"s_waitcnt vmcnt({n}) {extra}".rstrip())
        self.vm = self.vm[len(self.vm) - n:] if n else []
    def vm_wait_all(self, extra=""):
        self.e(f"s_waitcnt vmcnt(0) {extra}".rstrip())
        self.vm = []
    def text(self):
        return "\n".join(self.lines) + "\n"

def vr(b, n=1):
    return f"v{b}" if n == 1 else f"v[{b}:{b+n-1}]"
def sr(b, n=1):
    return f"s{b}" if n == 1 else f"s[{b}:{b+n-1}]"
```

```python
import struct, sys
from asmlib import Asm, vr, sr

def f32(x):
    return "0x%08x" % struct.unpack("<I", struct.pack("<f", x))[0]

NAME = "interleave_layers__grouped_kv_mqa__glu_gated_swiglu__prompt"
WQF  = 0x000000
WKVF = 0x084000
WOF  = 0x090000
W13F = 0x110000
W2F  = 0x4B0000
XF   = [0x700000, 0x900000, 0xB00000, 0xD00000]
SP   = [0xF00000, 0xF20000, 0xF40000, 0xF60000]
KVB  = [0xF80000, 0xFC0000]
OF   = [0x1000000, 0x1200000]
HF   = [0x1400000, 0x1C00000]
WS_BYTES = 0x10000000

LOG2E = 1.4426950408889634
QSCALE = 0.25 * LOG2E
T2 = 60.0 * 60.0
VLIM = 2.0 ** 40

kernels = []

def kstart(a, name):
    a.raw(f".globl {name}\n.p2align 8\n.type {name},@function\n{name}:")
    a.vm_reset()

def srd(a, s, base_lo, size):
    a.e(f"s_mov_b32 s{s}, s{base_lo}")
    a.e(f"s_mov_b32 s{s+1}, s{base_lo+1}")
    a.e(f"s_mov_b32 s{s+2}, {hex(size)}")
    a.e(f"s_mov_b32 s{s+3}, 0x20000")

def common_prologue(a, nwg, endl, extra_loads=()):
    a.e(f"s_cmp_ge_u32 s2, {nwg}")
    a.e(f"s_cbranch_scc1 {endl}")
    a.e("s_load_dwordx2 s[4:5], s[0:1], 88")
    for l in extra_loads:
        a.e(l)
    a.e("v_lshrrev_b32 v1, 6, v0")
    a.e("v_and_b32 v3, 31, v0")
    a.e("v_readfirstlane_b32 s14, v1")
    a.e("v_and_b32 v1, 63, v0")
    a.e("v_lshlrev_b32 v2, 4, v1")
    a.e("v_lshrrev_b32 v4, 5, v1")
    a.e("s_waitcnt lgkmcnt(0)")
    srd(a, 8, 4, WS_BYTES)

def halves_add(a, r, t):
    a.e(f"v_mov_b32 v{t}, v{r}")
    a.e("s_nop 1")
    a.e(f"v_permlane32_swap_b32 v{r}, v{t}")
    a.e("s_nop 1")
    a.e(f"v_add_f32 v{r}, v{r}, v{t}")

def halves_add2(a, r1, t1, r2, t2, op="v_add_f32"):
    a.e(f"v_mov_b32 v{t1}, v{r1}")
    a.e(f"v_mov_b32 v{t2}, v{r2}")
    a.e("s_nop 1")
    a.e(f"v_permlane32_swap_b32 v{r1}, v{t1}")
    a.e(f"v_permlane32_swap_b32 v{r2}, v{t2}")
    a.e("s_nop 1")
    a.e(f"{op} v{r1}, v{r1}, v{t1}")
    a.e(f"{op} v{r2}, v{r2}, v{t2}")

def stats_finish(a, s1, s2, rstd, bex, t):
    a.e(f"v_mul_f32 v{s1}, {f32(1/512)}, v{s1}")
    a.e(f"v_mul_f32 v{s2}, {f32(1/512)}, v{s2}")
    a.e(f"v_fma_f32 v{s2}, -v{s1}, v{s1}, v{s2}")
    a.e(f"v_max_f32 v{s2}, 0, v{s2}")
    a.e(f"v_add_f32 v{s2}, {f32(1e-5)}, v{s2}")
    a.e(f"v_rsq_f32 v{rstd}, v{s2}")
    a.e(f"v_and_b32 v{t}, 0xffff0000, v{s1}")
    a.e(f"v_sub_f32 v{t+1}, v{s1}, v{t}")
    a.e(f"v_cvt_pk_bf16_f32 v{bex}, -v{t}, -v{t}")
    a.e(f"v_cvt_pk_bf16_f32 v{bex+1}, -v{t+1}, 0")
    a.e(f"v_mov_b32 v{bex+2}, v{bex}")
    a.e(f"v_mov_b32 v{bex+3}, v{bex+1}")

def stats_load(a, dst, sp_base_s, voff):
    for j in range(4):
        a.vm_issue("st", f"buffer_load_dwordx2 {vr(dst+2*j,2)}, v{voff}, s[8:11], s{sp_base_s} offen offset:{256*j}")

def stats_sum(a, d, t):
    a.e(f"v_add_f32 v{d}, v{d}, v{d+2}")
    a.e(f"v_add_f32 v{d+1}, v{d+1}, v{d+3}")
    a.e(f"v_add_f32 v{d+4}, v{d+4}, v{d+6}")
    a.e(f"v_add_f32 v{d+5}, v{d+5}, v{d+7}")
    a.e(f"v_add_f32 v{d}, v{d}, v{d+4}")
    a.e(f"v_add_f32 v{d+1}, v{d+1}, v{d+5}")
    halves_add2(a, d, t, d + 1, t + 1)

def wave_max_dpp(a, r):
    for ctl in ("row_shr:1 row_mask:0xf bank_mask:0xf", "row_shr:2 row_mask:0xf bank_mask:0xf",
                "row_shr:4 row_mask:0xf bank_mask:0xf", "row_shr:8 row_mask:0xf bank_mask:0xf",
                "row_bcast:15 row_mask:0xa bank_mask:0xf", "row_bcast:31 row_mask:0xc bank_mask:0xf"):
        a.e("s_nop 1")
        a.e(f"v_max_f32_dpp v{r}, v{r}, v{r} {ctl}")

MFMA = "v_mfma_f32_32x32x16_bf16"
def mfma(a, d, x, y, c):
    cs = "0" if c is None else vr(c, 16)
    a.e(f"{MFMA} {vr(d,16)}, {vr(x,4)}, {vr(y,4)}, {cs}")

def kv_fin(a, kvb, PD, VT, rstd, aex, bex, s_tt, endl):
    lk = a.newlabel("kvfinV")
    mfma(a, 48, aex, bex, None)
    a.e("s_lshl_b32 s20, s14, 11")
    a.e(f"s_add_u32 s20, s20, {PD}")
    a.e("v_add_u32 v5, s20, v2")
    for src in range(4):
        a.e(f"ds_read_b128 {vr(72+8*src,4)}, v5 offset:{src*4096}")
        a.e(f"ds_read_b128 {vr(76+8*src,4)}, v5 offset:{src*4096+1024}")
    a.e("s_waitcnt lgkmcnt(0)")
    for j in range(8):
        a.e(f"v_add_f32 v{64+j}, v{72+j}, v{80+j}")
    for j in range(8):
        a.e(f"v_add_f32 v{88+j}, v{88+j}, v{96+j}")
    for j in range(8):
        a.e(f"v_add_f32 v{64+j}, v{64+j}, v{88+j}")
    for src in range(4):
        a.e(f"ds_read_b128 {vr(72+8*src,4)}, v5 offset:{(src+4)*4096}")
        a.e(f"ds_read_b128 {vr(76+8*src,4)}, v5 offset:{(src+4)*4096+1024}")
    a.e("s_waitcnt lgkmcnt(0)")
    for j in range(8):
        a.e(f"v_add_f32 v{72+j}, v{72+j}, v{80+j}")
    for j in range(8):
        a.e(f"v_add_f32 v{88+j}, v{88+j}, v{96+j}")
    for j in range(8):
        a.e(f"v_add_f32 v{64+j}, v{64+j}, v{72+j}")
    for j in range(8):
        a.e(f"v_add_f32 v{64+j}, v{64+j}, v{88+j}")
    a.e(f"s_lshl_b32 s21, s{s_tt}, 10")
    a.e(f"s_add_u32 s21, s21, {kvb}")
    a.e(f"s_lshl_b32 s22, s{s_tt}, 2")
    a.e(f"s_add_u32 s22, s22, {kvb + 131072}")
    a.e("s_cmp_eq_u32 s14, 1")
    a.e(f"s_cbranch_scc1 {lk}")
    for j in range(8):
        a.e(f"v_add_f32 v{64+j}, v{64+j}, v{48+j}")
    for j in range(8):
        a.e(f"v_mul_f32 v{64+j}, v{64+j}, v{rstd}")
    for j in range(4):
        a.e(f"v_cvt_pk_bf16_f32 v{72+j}, v{64+2*j}, v{65+2*j}")
    a.e(f"buffer_store_dwordx4 v[72:75], v2, s[8:11], s21 offen")
    a.e("v_mul_f32 v76, v64, v64")
    for j in range(1, 8):
        a.e(f"v_fmac_f32 v76, v{64+j}, v{64+j}")
    halves_add(a, 76, 77)
    wave_max_dpp(a, 76)
    a.e("v_mov_b32 v78, 0")
    a.e("s_mov_b32 s24, 0")
    a.e("s_mov_b32 s25, 0x80000000")
    a.e("s_mov_b64 exec, s[24:25]")
    a.e("buffer_store_dword v76, v78, s[8:11], s22 offen")
    a.e(f"s_branch {endl}")
    a.label(lk)
    for j in range(8):
        a.e(f"v_add_f32 v{64+j}, v{64+j}, v{56+j}")
    for j in range(8):
        a.e(f"v_mul_f32 v{64+j}, v{64+j}, v{rstd}")
    for j in range(4):
        a.e(f"v_cvt_pk_bf16_f32 v{72+j}, v{64+2*j}, v{65+2*j}")
    a.e("v_lshlrev_b32 v5, 5, v3")
    a.e("v_lshl_add_u32 v5, v4, 3, v5")
    a.e(f"ds_write_b64 v5, v[72:73] offset:{VT}")
    a.e(f"ds_write_b64 v5, v[74:75] offset:{VT+16}")
    a.e("v_lshlrev_b32 v6, 9, v4")
    a.e("v_bfe_u32 v7, v1, 4, 1")
    a.e("v_lshl_add_u32 v6, v7, 7, v6")
    a.e("v_bfe_u32 v7, v1, 2, 2")
    a.e("v_lshl_add_u32 v6, v7, 5, v6")
    a.e("v_and_b32 v7, 3, v1")
    a.e("v_lshl_add_u32 v6, v7, 3, v6")
    a.e("v_max3_f32 v76, abs(v64), abs(v65), abs(v66)")
    a.e("v_max3_f32 v76, abs(v67), abs(v68), v76")
    a.e("v_max3_f32 v76, abs(v69), abs(v70), v76")
    a.e("v_max_f32 v76, v76, abs(v71)")
    a.e("s_waitcnt lgkmcnt(0)")
    a.e(f"ds_read_b64_tr_b16 v[80:81], v6 offset:{VT}")
    a.e(f"ds_read_b64_tr_b16 v[82:83], v6 offset:{VT+256}")
    wave_max_dpp(a, 76)
    a.e("s_add_u32 s21, s21, 65536")
    a.e("s_waitcnt lgkmcnt(0)")
    a.e(f"buffer_store_dwordx4 v[80:83], v2, s[8:11], s21 offen")
    a.e("v_mov_b32 v78, 0")
    a.e("s_mov_b32 s24, 0")
    a.e("s_mov_b32 s25, 0x80000000")
    a.e("s_mov_b64 exec, s[24:25]")
    a.e("buffer_store_dword v76, v78, s[8:11], s22 offen offset:256")
    a.e(f"s_branch {endl}")

def gen_prep(a):
    name = "prep_kernel"
    kstart(a, name)
    endl = "prep_end"
    common_prologue(a, 264, endl, [
        "s_load_dwordx8 s[32:39], s[0:1], 0",
        "s_load_dwordx2 s[40:41], s[0:1], 32",
        "s_load_dwordx4 s[44:47], s[0:1], 48",
        "s_load_dwordx2 s[48:49], s[0:1], 64",
    ])
    a.e("s_mov_b32 s28, 0x3f803f80")
    a.e("s_cmp_lt_u32 s2, 64")
    a.e("s_cbranch_scc1 prep_x")
    a.e("s_cmp_lt_u32 s2, 176")
    a.e("s_cbranch_scc1 prep_w13")
    a.e("s_movk_i32 s24, 1024")
    a.e("s_movk_i32 s56, 32")
    a.e("s_movk_i32 s57, 64")
    a.e("s_movk_i32 s58, 2048")
    a.e("s_movk_i32 s59, 2112")
    a.e("s_cmp_lt_u32 s2, 208")
    a.e("s_cbranch_scc0 prep_w2")
    a.e("s_sub_u32 s12, s2, 176")
    a.e("s_and_b32 s13, s12, 15")
    a.e("s_and_b32 s60, s13, 3")
    a.e("s_lshr_b32 s13, s13, 2")
    a.e("s_lshl_b32 s15, s60, 3")
    a.e("s_add_u32 s15, s15, s14")
    a.e("s_lshl_b32 s25, s15, 14")
    a.e("s_lshl_b32 s30, s13, 8")
    a.e("s_add_u32 s25, s25, s30")
    a.e("s_add_u32 s26, s25, 128")
    a.e("s_cmp_lt_u32 s12, 16")
    a.e("s_cbranch_scc0 prep_wo")
    srd(a, 16, 34, 0x80000)
    srd(a, 20, 34, 0x80000)
    a.e(f"s_mul_i32 s30, s13, {4*33}")
    a.e("s_add_u32 s31, s30, s15")
    a.e("s_lshl_b32 s50, s31, 10")
    a.e(f"s_add_u32 s50, s50, {WQF}")
    a.e(f"s_add_u32 s51, s50, {33*1024}")
    a.e(f"s_add_u32 s52, s50, {66*1024}")
    a.e(f"s_add_u32 s53, s50, {99*1024}")
    a.e("s_and_b32 s31, s14, 3")
    a.e("s_mul_i32 s31, s31, 33")
    a.e("s_add_u32 s31, s31, s30")
    a.e("s_add_u32 s31, s31, 32")
    a.e("s_lshl_b32 s54, s31, 10")
    a.e(f"s_add_u32 s54, s54, {WQF}")
    a.e("s_mov_b32 s55, 1")
    a.e("s_branch prep_wgo")
    a.label("prep_wo")
    srd(a, 16, 40, 0x80000)
    srd(a, 20, 40, 0x80000)
    a.e("s_lshl_b32 s30, s13, 7")
    a.e("s_add_u32 s30, s30, s15")
    a.e("s_lshl_b32 s50, s30, 10")
    a.e(f"s_add_u32 s50, s50, {WOF}")
    a.e(f"s_add_u32 s51, s50, {32*1024}")
    a.e(f"s_add_u32 s52, s50, {64*1024}")
    a.e(f"s_add_u32 s53, s50, {96*1024}")
    a.e("s_mov_b32 s55, 0")
    a.e("s_branch prep_wgo")
    a.label("prep_w2")
    srd(a, 16, 48, 0x1C0000)
    srd(a, 20, 48, 0x1C0000)
    a.e("s_sub_u32 s12, s2, 208")
    a.e("s_and_b32 s13, s12, 3")
    a.e("s_lshr_b32 s12, s12, 2")
    a.e("s_lshl_b32 s15, s12, 3")
    a.e("s_add_u32 s15, s15, s14")
    a.e("s_lshl_b32 s25, s15, 14")
    a.e("s_lshl_b32 s30, s13, 8")
    a.e("s_add_u32 s25, s25, s30")
    a.e("s_add_u32 s26, s25, 128")
    a.e("s_mul_i32 s30, s15, 2341")
    a.e("s_lshr_b32 s30, s30, 16")
    a.e("s_mul_i32 s31, s30, 28")
    a.e("s_sub_u32 s31, s15, s31")
    a.e("s_lshl_b32 s31, s31, 13")
    a.e("s_lshl_b32 s30, s30, 11")
    a.e("s_add_u32 s50, s30, s31")
    a.e(f"s_mul_i32 s30, s13, {2*229376}")
    a.e("s_add_u32 s50, s50, s30")
    a.e(f"s_add_u32 s50, s50, {W2F}")
    a.e("s_add_u32 s51, s50, 1024")
    a.e("s_add_u32 s52, s50, 229376")
    a.e(f"s_add_u32 s53, s50, {229376+1024}")
    a.e("s_mov_b32 s55, 0")
    a.e("s_branch prep_wgo")
    a.label("prep_w13")
    srd(a, 16, 44, 0x1C0000)
    srd(a, 20, 46, 0x1C0000)
    a.e("s_movk_i32 s24, 3584")
    a.e("s_movk_i32 s56, 2048")
    a.e("s_movk_i32 s57, 32")
    a.e("s_movk_i32 s58, 64")
    a.e("s_movk_i32 s59, 96")
    a.e("s_sub_u32 s12, s2, 64")
    a.e("s_and_b32 s60, s12, 3")
    a.e("s_lshr_b32 s13, s12, 2")
    a.e("s_lshl_b32 s15, s60, 3")
    a.e("s_add_u32 s15, s15, s14")
    a.e(f"s_mul_i32 s25, s15, {16*3584}")
    a.e("s_lshl_b32 s30, s13, 7")
    a.e("s_add_u32 s25, s25, s30")
    a.e("s_mov_b32 s26, s25")
    def w13off(dst, s_t_expr_setup, ks_is_extra):
        a.e("s_mul_i32 s31, s30, 9363")
        a.e("s_lshr_b32 s31, s31, 16")
        a.e("s_mul_i32 s61, s31, 7")
        a.e("s_sub_u32 s61, s30, s61")
        a.e("s_mul_i32 s31, s31, 33")
        if ks_is_extra:
            a.e("s_add_u32 s31, s31, 32")
        else:
            a.e("s_add_u32 s31, s31, s15")
        a.e("s_mul_i32 s31, s31, 7")
        a.e("s_add_u32 s31, s31, s61")
        a.e(f"s_lshl_b32 s{dst}, s31, 10")
        a.e(f"s_add_u32 s{dst}, s{dst}, {W13F}")
    for t in range(4):
        a.e("s_lshl_b32 s30, s13, 2")
        if t:
            a.e(f"s_add_u32 s30, s30, {t}")
        w13off(50 + t, None, False)
    a.e("s_lshl_b32 s30, s13, 2")
    a.e("s_and_b32 s31, s14, 3")
    a.e("s_add_u32 s30, s30, s31")
    w13off(54, None, True)
    a.e("s_mov_b32 s55, 1")
    a.label("prep_wgo")
    a.e("v_lshrrev_b32 v5, 3, v1")
    a.e("v_mul_lo_u32 v5, v5, s24")
    a.e("v_and_b32 v6, 7, v1")
    a.e("v_lshl_add_u32 v5, v6, 4, v5")
    a.e("s_lshl_b32 s12, s14, 12")
    a.e("s_lshl_b32 s13, s24, 3")
    a.e("s_mov_b32 m0, s12")
    a.e("s_add_u32 s30, s25, s13")
    a.e("buffer_load_dwordx4 v5, s[16:19], s25 offen lds")
    a.e("s_add_u32 m0, s12, 1024")
    a.e("s_add_u32 s31, s26, s13")
    a.e("buffer_load_dwordx4 v5, s[16:19], s30 offen lds")
    a.e("s_add_u32 m0, s12, 2048")
    a.e("s_nop 0")
    a.e("buffer_load_dwordx4 v5, s[20:23], s26 offen lds")
    a.e("s_add_u32 m0, s12, 3072")
    a.e("s_nop 0")
    a.e("buffer_load_dwordx4 v5, s[20:23], s31 offen lds")
    a.e("v_bfe_u32 v6, v1, 2, 2")
    a.e("v_lshl_add_u32 v6, v4, 2, v6")
    a.e("v_lshlrev_b32 v6, 7, v6")
    a.e("v_and_b32 v7, 3, v1")
    a.e("v_lshl_add_u32 v6, v7, 3, v6")
    a.e("v_bfe_u32 v7, v1, 4, 1")
    a.e("v_mul_lo_u32 v7, v7, s56")
    a.e("v_add3_u32 v6, v6, v7, s12")
    a.e("v_add_u32 v7, s57, v6")
    a.e("v_add_u32 v8, s58, v6")
    a.e("v_add_u32 v9, s59, v6")
    a.e("s_waitcnt vmcnt(0)")
    for t in range(4):
        a.e(f"ds_read_b64_tr_b16 {vr(16+4*t,2)}, v{6+t}")
        a.e(f"ds_read_b64_tr_b16 {vr(18+4*t,2)}, v{6+t} offset:1024")
    for t in range(4):
        a.e(f"s_waitcnt lgkmcnt({6-2*t})")
        a.e(f"buffer_store_dwordx4 {vr(16+4*t,4)}, v2, s[8:11], s{50+t} offen")
    a.e("s_cmp_eq_u32 s55, 0")
    a.e(f"s_cbranch_scc1 {endl}")
    for t in range(4):
        a.e(f"v_mov_b32 v{32+t}, 0")
    a.e("v_mov_b32 v36, s28")
    for j in range(4):
        for t in range(4):
            a.e(f"v_dot2c_f32_bf16 v{32+t}, v{16+4*t+j}, v36")
    a.e("v_lshlrev_b32 v5, 6, v3")
    a.e("v_lshl_add_u32 v5, v4, 2, v5")
    a.e("s_lshl_b32 s12, s14, 3")
    a.e("v_add_u32 v5, s12, v5")
    a.e("s_nop 1")
    for t in range(4):
        a.e(f"ds_write_b32 v5, v{32+t} offset:{32768 + t*2048}")
    a.e("s_waitcnt lgkmcnt(0)")
    a.e("s_barrier")
    a.e("s_cmp_ge_u32 s14, 4")
    a.e(f"s_cbranch_scc1 {endl}")
    a.e("s_lshl_b32 s12, s14, 11")
    a.e("v_lshlrev_b32 v5, 6, v3")
    a.e("v_add_u32 v5, s12, v5")
    for j in range(4):
        a.e(f"ds_read_b128 {vr(40+4*j,4)}, v5 offset:{32768+16*j}")
    a.e("s_waitcnt lgkmcnt(0)")
    for j in range(8):
        a.e(f"v_add_f32 v{40+j}, v{40+j}, v{48+j}")
    for j in range(4):
        a.e(f"v_add_f32 v{40+j}, v{40+j}, v{44+j}")
    a.e("v_add_f32 v40, v40, v42")
    a.e("v_add_f32 v41, v41, v43")
    a.e("v_add_f32 v40, v40, v41")
    a.e("v_and_b32 v41, 0xffff0000, v40")
    a.e("v_sub_f32 v42, v40, v41")
    a.e("v_cvt_pk_bf16_f32 v44, v41, v42")
    a.e("v_cvt_pk_bf16_f32 v45, v41, 0")
    a.e("s_lshr_b32 s12, s60, 1")
    a.e("s_lshl_b32 s12, s12, 9")
    a.e("s_and_b32 s13, s60, 1")
    a.e("s_lshl_b32 s13, s13, 3")
    a.e("s_add_u32 s12, s12, s13")
    a.e("s_add_u32 s54, s54, s12")
    a.e("v_lshlrev_b32 v5, 4, v3")
    a.e("buffer_store_dwordx2 v[44:45], v5, s[8:11], s54 offen")
    a.e(f"s_branch {endl}")
    a.label("prep_x")
    CS2, ST, VT, IMG, PD = 0, 2048, 4096, 8192, 40960
    srd(a, 16, 32, 0x200000)
    srd(a, 20, 36, 0x4000)
    srd(a, 24, 38, 0x4000)
    a.e("v_lshlrev_b32 v5, 10, v3")
    a.e("v_lshl_add_u32 v5, v4, 4, v5")
    a.e("s_lshl_b32 s12, s2, 15")
    a.e("s_lshl_b32 s13, s14, 7")
    a.e("s_add_u32 s12, s12, s13")
    for kk in range(4):
        a.e(f"buffer_load_dwordx4 {vr(16+4*kk,4)}, v5, s[16:19], s12 offen offset:{32*kk}")
    a.e("s_lshl_b32 s12, s14, 12")
    a.e(f"s_add_u32 s12, s12, {IMG}")
    a.e("s_lshl_b32 s13, s14, 11")
    a.e("s_mov_b32 m0, s12")
    a.e("s_nop 0")
    a.e("buffer_load_dwordx4 v2, s[20:23], s13 offen lds")
    a.e("buffer_load_dwordx4 v2, s[20:23], s13 offen offset:1024 lds")
    a.e("s_add_u32 m0, s12, 2048")
    a.e("s_nop 0")
    a.e("buffer_load_dwordx4 v2, s[24:27], s13 offen lds")
    a.e("buffer_load_dwordx4 v2, s[24:27], s13 offen offset:1024 lds")
    a.e("v_bfe_u32 v6, v1, 2, 2")
    a.e("v_lshl_add_u32 v6, v4, 2, v6")
    a.e("v_lshlrev_b32 v6, 5, v6")
    a.e("v_and_b32 v7, 3, v1")
    a.e("v_lshl_add_u32 v6, v7, 3, v6")
    a.e("v_bfe_u32 v7, v1, 4, 1")
    a.e("v_lshl_add_u32 v6, v7, 11, v6")
    a.e("v_add_u32 v6, s12, v6")
    a.e("v_mov_b32 v8, 0")
    a.e("v_mov_b32 v9, 0")
    a.e("v_mov_b32 v10, 0")
    a.e("v_mov_b32 v11, s28")
    a.e("s_waitcnt vmcnt(4)")
    for kk in range(4):
        a.e(f"v_permlane32_swap_b32 v{16+4*kk}, v{18+4*kk}")
        a.e(f"v_permlane32_swap_b32 v{17+4*kk}, v{19+4*kk}")
    a.e("s_lshl_b32 s12, s2, 15")
    a.e("s_lshl_b32 s13, s14, 12")
    a.e("s_add_u32 s12, s12, s13")
    a.e(f"s_add_u32 s12, s12, {XF[0]}")
    for kk in range(4):
        a.e(f"buffer_store_dwordx4 {vr(16+4*kk,4)}, v2, s[8:11], s12 offen offset:{1024*kk}")
    for j in range(16):
        a.e(f"v_dot2c_f32_bf16 v8, v{16+j}, v11")
        a.e(f"v_dot2c_f32_bf16 v9, v{16+j}, v{16+j}")
    a.e("s_waitcnt vmcnt(4)")
    for kk in range(4):
        a.e(f"ds_read_b64_tr_b16 {vr(32+4*kk,2)}, v6 offset:{512*kk}")
        a.e(f"ds_read_b64_tr_b16 {vr(34+4*kk,2)}, v6 offset:{512*kk+256}")
    halves_add2(a, 8, 12, 9, 13)
    a.e("v_lshlrev_b32 v5, 3, v3")
    a.e("s_lshl_b32 s12, s2, 11")
    a.e("s_lshl_b32 s13, s14, 8")
    a.e("s_add_u32 s12, s12, s13")
    a.e(f"s_add_u32 s12, s12, {SP[0]}")
    a.e("buffer_store_dwordx2 v[8:9], v5, s[8:11], s12 offen")
    a.e("v_lshlrev_b32 v5, 6, v3")
    a.e("s_lshl_b32 s13, s14, 3")
    a.e("v_add_u32 v7, s13, v5")
    a.e(f"v_add_u32 v7, {ST}, v7")
    a.e("ds_write_b64 v7, v[8:9]")
    a.e("s_waitcnt lgkmcnt(1)")
    for kk in range(4):
        mfma(a, 48, 32 + 4 * kk, 16 + 4 * kk, None if kk == 0 else 48)
    for j in range(16):
        a.e(f"v_dot2c_f32_bf16 v10, v{32+j}, v11")
    a.e("v_lshl_add_u32 v7, v4, 2, v5")
    a.e("v_add_u32 v7, s13, v7")
    a.e(f"v_add_u32 v7, {CS2}, v7")
    a.e("s_nop 1")
    a.e("ds_write_b32 v7, v10")
    lnk = a.newlabel("nowkv")
    a.e("s_cmp_lg_u32 s2, 0")
    a.e(f"s_cbranch_scc1 {lnk}")
    a.e("s_lshl_b32 s12, s14, 12")
    a.e(f"s_add_u32 s12, s12, {WKVF}")
    for kk in range(4):
        a.e(f"buffer_store_dwordx4 {vr(32+4*kk,4)}, v2, s[8:11], s12 offen offset:{1024*kk}")
    a.label(lnk)
    a.e("s_lshl_b32 s12, s14, 12")
    a.e(f"s_add_u32 s12, s12, {PD}")
    a.e("v_add_u32 v7, s12, v2")
    a.e("s_nop 4")
    for j in range(4):
        a.e(f"ds_write_b128 v7, {vr(48+4*j,4)} offset:{1024*j}")
    a.e("s_waitcnt lgkmcnt(0)")
    a.e("s_barrier")
    a.e("s_cmp_ge_u32 s14, 2")
    a.e(f"s_cbranch_scc1 {endl}")
    a.e(f"v_add_u32 v7, {CS2}, v5")
    for j in range(4):
        a.e(f"ds_read_b128 {vr(16+4*j,4)}, v7 offset:{ST-CS2+16*j}")
    for j in range(4):
        a.e(f"ds_read_b128 {vr(32+4*j,4)}, v7 offset:{16*j}")
    a.e("s_waitcnt lgkmcnt(4)")
    for j in range(8):
        a.e(f"v_add_f32 v{16+j}, v{16+j}, v{24+j}")
    for j in range(4):
        a.e(f"v_add_f32 v{16+j}, v{16+j}, v{20+j}")
    a.e("v_add_f32 v16, v16, v18")
    a.e("v_add_f32 v17, v17, v19")
    stats_finish(a, 16, 17, 8, 104, 18)
    a.e("s_waitcnt lgkmcnt(0)")
    for j in range(8):
        a.e(f"v_add_f32 v{32+j}, v{32+j}, v{40+j}")
    for j in range(4):
        a.e(f"v_add_f32 v{32+j}, v{32+j}, v{36+j}")
    a.e("v_add_f32 v32, v32, v34")
    a.e("v_add_f32 v33, v33, v35")
    a.e("v_add_f32 v32, v32, v33")
    a.e("v_cmp_eq_u32 vcc, 0, v4")
    a.e("s_nop 1")
    a.e("v_cndmask_b32 v32, 0, v32, vcc")
    a.e("v_and_b32 v33, 0xffff0000, v32")
    a.e("v_sub_f32 v34, v32, v33")
    a.e("v_cvt_pk_bf16_f32 v108, v33, v34")
    a.e("v_cvt_pk_bf16_f32 v109, v33, 0")
    a.e("v_mov_b32 v110, 0")
    a.e("v_mov_b32 v111, 0")
    lnk = a.newlabel("noaex")
    a.e("s_add_u32 s12, s2, s14")
    a.e("s_cmp_lg_u32 s12, 0")
    a.e(f"s_cbranch_scc1 {lnk}")
    a.e(f"s_mov_b32 s12, {WKVF + 32*1024}")
    a.e("buffer_store_dwordx4 v[108:111], v2, s[8:11], s12 offen")
    a.label(lnk)
    a.e("s_nop 1")
    kv_fin(a, KVB[0], PD, VT, 8, 108, 104, 2, endl)
    a.label(endl)
    a.e("s_endpgm")
    kernels.append((name, 112, 64))
    return (name, 264, 512, PD + 32768)

def gen_kv(a, layer):
    name = f"kv{layer}_kernel"
    kstart(a, name)
    endl = f"kv{layer}_end"
    VT, PD = 0, 1024
    common_prologue(a, 64, endl)
    xf, sp, kvb = XF[2 * layer], SP[2 * layer], KVB[layer]
    a.e("s_and_b32 s12, s2, 7")
    a.e("s_lshr_b32 s13, s2, 3")
    a.e("s_lshl_b32 s15, s12, 3")
    a.e("s_add_u32 s15, s15, s13")
    a.e("s_lshl_b32 s16, s15, 15")
    a.e("s_lshl_b32 s17, s14, 12")
    a.e("s_add_u32 s16, s16, s17")
    a.e(f"s_add_u32 s16, s16, {xf}")
    a.e(f"s_add_u32 s17, s17, {WKVF}")
    for kk in range(4):
        a.vm_issue(("x", kk), f"buffer_load_dwordx4 {vr(16+4*kk,4)}, v2, s[8:11], s16 offen offset:{1024*kk}")
        a.vm_issue(("w", kk), f"buffer_load_dwordx4 {vr(32+4*kk,4)}, v2, s[8:11], s17 offen offset:{1024*kk}")
    a.e("v_lshlrev_b32 v5, 3, v3")
    a.e("v_lshl_add_u32 v5, v4, 10, v5")
    a.e("s_lshl_b32 s18, s15, 11")
    a.e(f"s_add_u32 s18, s18, {sp}")
    a.e(f"s_mov_b32 s19, {WKVF + 32*1024}")
    stats_load(a, 112, 18, 5)
    a.vm_issue("aex", "buffer_load_dwordx4 v[108:111], v2, s[8:11], s19 offen")
    for kk in range(4):
        a.vm_wait(("w", kk))
        mfma(a, 48, 32 + 4 * kk, 16 + 4 * kk, None if kk == 0 else 48)
    a.e("s_lshl_b32 s12, s14, 12")
    a.e(f"s_add_u32 s12, s12, {PD}")
    a.e("v_add_u32 v7, s12, v2")
    a.vm_wait("aex")
    stats_sum(a, 112, 12)
    stats_finish(a, 112, 113, 8, 104, 12)
    for j in range(4):
        a.e(f"ds_write_b128 v7, {vr(48+4*j,4)} offset:{1024*j}")
    a.e("s_waitcnt lgkmcnt(0)")
    a.e("s_barrier")
    a.e("s_cmp_ge_u32 s14, 2")
    a.e(f"s_cbranch_scc1 {endl}")
    kv_fin(a, kvb, PD, VT, 8, 108, 104, 15, endl)
    a.label(endl)
    a.e("s_endpgm")
    kernels.append((name, 120, 32))
    return (name, 64, 512, PD + 32768)

SA, SB, OA, OB = 16, 32, 48, 64
QA, QB, P0, P1 = 80, 84, 88, 92
KB = [96, 100]
VB = [[104, 108], [112, 116]]
NMA, NMB = 128, 144
EX = 131072

def att_iter(a, i, slow, dma=None):
    E = lambda r: a.e(f"v_exp_f32 v{r}, v{r}")
    def C(p, s):
        for j in range(4):
            a.e(f"v_cvt_pk_bf16_f32 v{p+j}, v{s+2*j}, v{s+2*j+1}")
    ca = NMA if slow else None
    cb = NMB if slow else None
    vcur, vprev = VB[i % 2], VB[(i + 1) % 2]
    E(SA); E(SA + 1)
    mfma(a, OB, vprev[1], P1, OB)
    for r in range(2, 6): E(SA + r)
    mfma(a, SB, KB[i % 2], QB, cb)
    a.e("s_waitcnt lgkmcnt(0)")
    if dma:
        dma()
    a.e(f"ds_read_b128 {vr(KB[i%2],4)}, v5 offset:{(i+2)*1024}")
    a.e("s_mov_b64 exec, s[20:21]")
    a.e(f"ds_read_b128 {vr(vprev[0],4)}, v6 offset:{(i+1)*1024}")
    a.e(f"ds_read_b128 {vr(vprev[1],4)}, v6 offset:{(i+1)*1024+512}")
    a.e("s_mov_b64 exec, -1")
    E(SA + 6); E(SA + 7)
    C(P0, SA)
    E(SA + 8); E(SA + 9)
    mfma(a, OA, vcur[0], P0, OA)
    for r in range(10, 16): E(SA + r)
    C(P1, SA + 8)
    E(SB); E(SB + 1)
    mfma(a, OA, vcur[1], P1, OA)
    for r in range(2, 6): E(SB + r)
    mfma(a, SA, KB[(i + 1) % 2], QA, ca)
    E(SB + 6); E(SB + 7)
    C(P0, SB)
    E(SB + 8); E(SB + 9)
    mfma(a, OB, vcur[0], P0, OB)
    for r in range(10, 16): E(SB + r)
    C(P1, SB + 8)

def gen_att(a, layer):
    name = f"att{layer}_kernel"
    kstart(a, name)
    endl = f"att{layer}_end"
    common_prologue(a, 256, endl)
    xf, sp, kvb, of = XF[2 * layer], SP[2 * layer], KVB[layer], OF[layer]
    a.e("s_and_b32 s12, s2, 7")
    a.e("s_lshr_b32 s13, s2, 3")
    a.e("s_lshl_b32 s15, s12, 3")
    a.e("s_lshr_b32 s16, s13, 2")
    a.e("s_add_u32 s15, s15, s16")
    a.e("s_and_b32 s16, s13, 3")
    a.e("s_lshl_b32 s16, s16, 2")
    a.e("s_and_b32 s18, s14, 3")
    a.e("s_add_u32 s16, s16, s18")
    a.e("s_lshr_b32 s17, s14, 2")
    a.e("v_lshlrev_b32 v5, 3, v3")
    a.e("v_lshl_add_u32 v5, v4, 10, v5")
    a.e("s_lshl_b32 s19, s15, 11")
    a.e(f"s_add_u32 s19, s19, {sp}")
    stats_load(a, 40, 19, 5)
    a.e("v_lshlrev_b32 v6, 2, v1")
    a.e(f"s_mov_b32 s19, {kvb + 131072}")
    a.vm_issue("kn", "buffer_load_dword v120, v6, s[8:11], s19 offen")
    a.vm_issue("kn", "buffer_load_dword v121, v6, s[8:11], s19 offen offset:256")
    a.e("s_mul_i32 s22, s16, 33")
    a.e("s_lshl_b32 s23, s17, 4")
    a.e("s_add_u32 s24, s22, 32")
    a.e("s_lshl_b32 s24, s24, 10")
    a.e(f"s_add_u32 s24, s24, {WQF}")
    a.vm_issue("aex", "buffer_load_dwordx4 v[32:35], v2, s[8:11], s24 offen")
    a.e("s_add_u32 s22, s22, s23")
    a.e("s_lshl_b32 s22, s22, 10")
    a.e(f"s_add_u32 s22, s22, {WQF}")
    a.e("s_lshl_b32 s24, s15, 5")
    a.e("s_add_u32 s23, s23, s24")
    a.e("s_lshl_b32 s23, s23, 10")
    a.e(f"s_add_u32 s23, s23, {xf}")
    for i in range(16):
        a.vm_issue(("a", i), f"buffer_load_dwordx4 {vr(128+4*i,4)}, v2, s[8:11], s22 offen offset:{1024*(i%4)}")
        a.vm_issue(("b", i), f"buffer_load_dwordx4 {vr(192+4*i,4)}, v2, s[8:11], s23 offen offset:{1024*(i%4)}")
        if i % 4 == 3 and i < 15:
            a.e("s_add_u32 s22, s22, 4096")
            a.e("s_add_u32 s23, s23, 4096")
    a.e("s_lshl_b32 s26, s17, 15")
    a.e("s_lshl_b32 s27, s18, 11")
    a.e("s_add_u32 s26, s26, s27")
    def dma_chunk(tag):
        a.e("s_mov_b32 m0, s26")
        a.e(f"s_add_u32 s27, s26, {kvb}")
        a.vm_issue(tag, "buffer_load_dwordx4 v2, s[8:11], s27 offen lds")
        a.vm_issue(tag, "buffer_load_dwordx4 v2, s[8:11], s27 offen offset:1024 lds")
        a.e("s_add_u32 m0, s26, 65536")
        a.e(f"s_add_u32 s27, s26, {kvb + 65536}")
        a.vm_issue(tag, "buffer_load_dwordx4 v2, s[8:11], s27 offen lds")
        a.vm_issue(tag, "buffer_load_dwordx4 v2, s[8:11], s27 offen offset:1024 lds")
        a.e("s_add_u32 s26, s26, 8192")
    dma_chunk("c0")
    dma_chunk("c1")
    a.e("s_mov_b32 s20, 0xffff0000")
    a.e("s_mov_b32 s21, 0xffff0000")
    a.e("v_and_b32 v7, 27, v3")
    a.e("v_cmp_eq_u32 vcc, 0, v7")
    a.e("v_mov_b32 v7, 0x3f803f80")
    a.e("s_nop 0")
    a.e("v_cndmask_b32 v7, 0, v7, vcc")
    for r in range(104, 120):
        a.e(f"v_mov_b32 v{r}, v7")
    for r in range(OA, OA + 32):
        a.e(f"v_mov_b32 v{r}, 0")
    for r in range(P1, P1 + 4):
        a.e(f"v_mov_b32 v{r}, 0")
    a.e("s_lshl_b32 s28, s17, 15")
    a.e("v_add_u32 v5, s28, v2")
    a.e("v_and_b32 v6, 15, v1")
    a.e("v_lshlrev_b32 v6, 4, v6")
    a.e("v_lshl_add_u32 v6, v4, 8, v6")
    a.e("s_add_u32 s28, s28, 65536")
    a.e("v_add_u32 v6, s28, v6")
    a.vm_wait("kn")
    stats_sum(a, 40, 8)
    stats_finish(a, 40, 41, 122, 36, 8)
    a.e(f"v_mul_f32 v122, {f32(QSCALE)}, v122")
    wave_max_dpp(a, 120)
    a.e(f"v_mov_b32 v8, {f32(VLIM)}")
    a.e("v_cmp_nle_f32 s[30:31], v121, v8")
    a.e("v_readlane_b32 s29, v120, 63")
    for i in range(16):
        a.vm_wait(("b", i))
        mfma(a, SA, 128 + 4 * i, 192 + 4 * i, None if i == 0 else SA)
    lsk = a.newlabel("noex")
    a.e("s_cmp_lg_u32 s17, 0")
    a.e(f"s_cbranch_scc1 {lsk}")
    mfma(a, SA, 32, 36, SA)
    a.label(lsk)
    a.e("s_lshl_b32 s28, s14, 12")
    a.e(f"s_add_u32 s28, s28, {EX}")
    a.e("v_add_u32 v8, s28, v2")
    a.e("s_xor_b32 s28, s28, 16384")
    a.e("v_add_u32 v9, s28, v2")
    a.e("s_nop 7")
    for j in range(4):
        a.e(f"ds_write_b128 v8, {vr(SA+4*j,4)} offset:{1024*j}")
    a.vm_wait("c0", "lgkmcnt(0)")
    a.e("s_barrier")
    for j in range(4):
        a.e(f"ds_read_b128 {vr(SB+4*j,4)}, v9 offset:{1024*j}")
    a.e(f"ds_read_b128 {vr(KB[0],4)}, v5")
    a.e(f"ds_read_b128 {vr(KB[1],4)}, v5 offset:1024")
    a.e("s_mov_b64 exec, s[20:21]")
    a.e(f"ds_read_b128 {vr(VB[0][0],4)}, v6")
    a.e(f"ds_read_b128 {vr(VB[0][1],4)}, v6 offset:512")
    a.e("s_mov_b64 exec, -1")
    a.e("s_waitcnt lgkmcnt(4)")
    for j in range(16):
        a.e(f"v_add_f32 v{SA+j}, v{SA+j}, v{SB+j}")
    for j in range(16):
        a.e(f"v_mul_f32 v{SA+j}, v{SA+j}, v122")
    for j in range(8):
        a.e(f"v_cvt_pk_bf16_f32 v{QA+j}, v{SA+2*j}, v{SA+2*j+1}")
    a.e(f"v_mul_f32 v10, v{SA}, v{SA}")
    a.e(f"v_mul_f32 v11, v{SA+8}, v{SA+8}")
    for j in range(1, 8):
        a.e(f"v_fmac_f32 v10, v{SA+j}, v{SA+j}")
        a.e(f"v_fmac_f32 v11, v{SA+8+j}, v{SA+8+j}")
    halves_add2(a, 10, 12, 11, 13)
    a.e("v_max_f32 v10, v10, v11")
    a.e("v_mul_f32 v10, s29, v10")
    a.e(f"v_mov_b32 v11, {f32(T2)}")
    a.e("v_cmp_nle_f32 vcc, v10, v11")
    a.e("s_waitcnt lgkmcnt(0)")
    a.e("s_or_b64 s[30:31], s[30:31], vcc")
    a.e("s_cmp_lg_u64 s[30:31], 0")
    lslow, lepi = f"att{layer}_slow", f"att{layer}_epi"
    a.e(f"s_cbranch_scc1 {lslow}")
    saved_vm = list(a.vm)
    def main_loop(slow):
        mfma(a, SA, KB[0], QA, NMA if slow else None)
        a.e("s_mov_b32 s28, 0")
        a.e("s_nop 11")
        lp = a.newlabel("attloop")
        a.raw(".p2align 6")
        a.label(lp)
        for i in range(8):
            def dma():
                a.e("s_waitcnt vmcnt(0)")
                a.e("s_barrier")
                l2 = a.newlabel("nodma")
                a.e("s_cmp_ge_u32 s28, 2")
                a.e(f"s_cbranch_scc1 {l2}")
                dma_chunk("cx")
                a.label(l2)
                a.vm_reset()
            att_iter(a, i, slow, dma if i == 6 else None)
        a.e("v_add_u32 v5, 8192, v5")
        a.e("v_add_u32 v6, 8192, v6")
        a.e("s_add_u32 s28, s28, 1")
        a.e("s_cmp_lt_u32 s28, 4")
        a.e(f"s_cbranch_scc1 {lp}")
        mfma(a, OB, VB[1][1], P1, OB)
    main_loop(False)
    a.label(lepi)
    lb = a.newlabel("epib")
    lj = a.newlabel("epij")
    a.e("s_waitcnt lgkmcnt(0)")
    a.e("s_nop 7")
    a.e("s_nop 3")
    a.e("s_cmp_lg_u32 s17, 0")
    a.e(f"s_cbranch_scc1 {lb}")
    a.e(f"ds_write_b128 v8, {vr(OB+8,4)}")
    a.e(f"ds_write_b128 v8, {vr(OB+12,4)} offset:1024")
    a.e(f"ds_write_b32 v8, v{OB} offset:2048")
    a.e(f"s_branch {lj}")
    a.label(lb)
    a.e(f"ds_write_b128 v8, {vr(OA+8,4)}")
    a.e(f"ds_write_b128 v8, {vr(OA+12,4)} offset:1024")
    a.e(f"ds_write_b32 v8, v{OA} offset:2048")
    a.e("s_waitcnt lgkmcnt(0)")
    a.e(f"v_mov_b32 v{OA}, v{OB}")
    for j in range(8, 16):
        a.e(f"v_mov_b32 v{OA+j}, v{OB+j}")
    a.label(lj)
    a.e("s_waitcnt lgkmcnt(0)")
    a.e("s_barrier")
    a.e(f"ds_read_b32 v{SA}, v9 offset:2048")
    a.e(f"ds_read_b128 {vr(SA+8,4)}, v9")
    a.e(f"ds_read_b128 {vr(SA+12,4)}, v9 offset:1024")
    a.e("s_lshl_b32 s22, s15, 5")
    a.e("s_lshl_b32 s23, s16, 1")
    a.e("s_add_u32 s22, s22, s23")
    a.e("s_add_u32 s22, s22, s17")
    a.e("s_lshl_b32 s22, s22, 10")
    a.e(f"s_add_u32 s22, s22, {of}")
    a.e("s_waitcnt lgkmcnt(2)")
    a.e(f"v_add_f32 v{OA}, v{OA}, v{SA}")
    a.e(f"v_rcp_f32 v{OA}, v{OA}")
    a.e("s_waitcnt lgkmcnt(0)")
    for j in range(8, 16):
        a.e(f"v_add_f32 v{OA+j}, v{OA+j}, v{SA+j}")
    for j in range(8, 16):
        a.e(f"v_mul_f32 v{OA+j}, v{OA+j}, v{OA}")
    for j in range(4):
        a.e(f"v_cvt_pk_bf16_f32 v{P0+j}, v{OA+8+2*j}, v{OA+9+2*j}")
    a.e(f"buffer_store_dwordx4 {vr(P0,4)}, v2, s[8:11], s22 offen")
    a.label(endl)
    a.e("s_endpgm")
    a.label(lslow)
    a.e("s_waitcnt vmcnt(0)")
    a.e("v_mov_b32 v10, 0xff800000")
    a.e("v_mov_b32 v11, 0xff800000")
    a.e(f"s_mov_b32 s22, {kvb}")
    lm = a.newlabel("maxloop")
    a.label(lm)
    a.e("buffer_load_dwordx4 v[12:15], v2, s[8:11], s22 offen")
    a.e("s_waitcnt vmcnt(0)")
    mfma(a, SA, 12, QA, None)
    mfma(a, SB, 12, QB, None)
    a.e("s_nop 15")
    for j in range(8):
        a.e(f"v_max3_f32 v10, v{SA+2*j}, v{SA+2*j+1}, v10")
        a.e(f"v_max3_f32 v11, v{SB+2*j}, v{SB+2*j+1}, v11")
    a.e("s_add_u32 s22, s22, 1024")
    a.e(f"s_cmp_lt_u32 s22, {kvb + 65536}")
    a.e(f"s_cbranch_scc1 {lm}")
    halves_add2(a, 10, 12, 11, 13, op="v_max_f32")
    for j in range(16):
        a.e(f"v_sub_f32 v{NMA+j}, 0, v10")
        a.e(f"v_sub_f32 v{NMB+j}, 0, v11")
    a.e("s_nop 1")
    a.vm = []
    main_loop(True)
    a.e(f"s_branch {lepi}")
    kernels.append((name, 256, 40))
    return (name, 256, 512, 163840)

def resid_epilogue(a, RED, STL, xout, spout, final, endl):
    a.e("s_lshl_b32 s22, s18, 15")
    a.e(f"s_add_u32 s22, s22, {RED}")
    a.e("s_lshl_b32 s23, s17, 11")
    a.e("s_add_u32 s23, s23, s22")
    a.e("v_add_u32 v8, s23, v2")
    a.e("s_lshl_b32 s23, s17, 13")
    a.e("s_add_u32 s23, s23, s22")
    a.e("v_add_u32 v9, s23, v2")
    a.e("s_nop 7")
    for d in range(4):
        a.e(f"ds_write_b128 v8, {vr(16+8*d,4)} offset:{d*8192}")
        a.e(f"ds_write_b128 v8, {vr(20+8*d,4)} offset:{d*8192+1024}")
    a.e("s_waitcnt lgkmcnt(0)")
    a.e("s_barrier")
    for s in range(4):
        a.e(f"ds_read_b128 {vr(16+8*s,4)}, v9 offset:{s*2048}")
        a.e(f"ds_read_b128 {vr(20+8*s,4)}, v9 offset:{s*2048+1024}")
    a.vm_wait("res")
    for j in range(4):
        a.e(f"v_lshlrev_b32 v{56+2*j}, 16, v{48+j}")
        a.e(f"v_and_b32 v{57+2*j}, 0xffff0000, v{48+j}")
    a.e("s_waitcnt lgkmcnt(4)")
    for j in range(8):
        a.e(f"v_add_f32 v{16+j}, v{16+j}, v{24+j}")
    a.e("s_waitcnt lgkmcnt(0)")
    for j in range(8):
        a.e(f"v_add_f32 v{32+j}, v{32+j}, v{40+j}")
    for j in range(8):
        a.e(f"v_add_f32 v{16+j}, v{16+j}, v{32+j}")
    for j in range(8):
        a.e(f"v_add_f32 v{16+j}, v{16+j}, v{56+j}")
    for j in range(4):
        a.e(f"v_cvt_pk_bf16_f32 v{24+j}, v{16+2*j}, v{17+2*j}")
    if final:
        a.e("v_lshlrev_b32 v8, 10, v3")
        a.e("v_lshl_add_u32 v8, v4, 4, v8")
        a.e("v_permlane32_swap_b32 v24, v26")
        a.e("v_permlane32_swap_b32 v25, v27")
        a.e("s_lshl_b32 s22, s15, 15")
        a.e("s_lshl_b32 s23, s16, 7")
        a.e("s_add_u32 s22, s22, s23")
        a.e("s_lshl_b32 s23, s17, 5")
        a.e("s_add_u32 s22, s22, s23")
        a.e("buffer_store_dwordx4 v[24:27], v8, s[24:27], s22 offen")
        return
    a.e(f"s_add_u32 s22, s19, {xout}")
    a.e("buffer_store_dwordx4 v[24:27], v2, s[8:11], s22 offen")
    a.e("v_add_f32 v28, v16, v17")
    a.e("v_mul_f32 v29, v16, v16")
    a.e("v_fmac_f32 v29, v17, v17")
    for j in range(2, 8):
        a.e(f"v_add_f32 v28, v28, v{16+j}")
        a.e(f"v_fmac_f32 v29, v{16+j}, v{16+j}")
    a.e("v_lshlrev_b32 v8, 6, v3")
    a.e("v_lshl_add_u32 v8, v4, 3, v8")
    a.e("s_lshl_b32 s22, s18, 11")
    a.e("s_lshl_b32 s23, s17, 4")
    a.e("s_add_u32 s22, s22, s23")
    a.e(f"s_add_u32 s22, s22, {STL}")
    a.e("v_add_u32 v8, s22, v8")
    a.e("ds_write_b64 v8, v[28:29]")
    a.e("s_waitcnt lgkmcnt(0)")
    a.e("s_barrier")
    a.e("s_cmp_lg_u32 s14, 0")
    a.e(f"s_cbranch_scc1 {endl}")
    a.e("v_lshlrev_b32 v8, 6, v1")
    a.e(f"v_add_u32 v8, {STL}, v8")
    for j in range(4):
        a.e(f"ds_read_b128 {vr(32+4*j,4)}, v8 offset:{16*j}")
    a.e("v_lshlrev_b32 v8, 3, v3")
    a.e("v_lshl_add_u32 v8, v4, 11, v8")
    a.e("s_lshl_b32 s22, s15, 11")
    a.e("s_lshl_b32 s23, s16, 8")
    a.e("s_add_u32 s22, s22, s23")
    a.e(f"s_add_u32 s22, s22, {spout}")
    a.e("s_waitcnt lgkmcnt(0)")
    for j in range(8):
        a.e(f"v_add_f32 v{32+j}, v{32+j}, v{40+j}")
    for j in range(4):
        a.e(f"v_add_f32 v{32+j}, v{32+j}, v{36+j}")
    a.e("v_add_f32 v32, v32, v34")
    a.e("v_add_f32 v33, v33, v35")
    a.e("buffer_store_dwordx2 v[32:33], v8, s[8:11], s22 offen")

def resid_ids(a):
    a.e("s_and_b32 s12, s2, 7")
    a.e("s_lshr_b32 s13, s2, 3")
    a.e("s_and_b32 s18, s14, 1")
    a.e("s_lshr_b32 s17, s14, 1")
    a.e("s_and_b32 s16, s13, 7")
    a.e("s_lshr_b32 s15, s13, 3")
    a.e("s_lshl_b32 s15, s15, 1")
    a.e("s_lshl_b32 s19, s12, 3")
    a.e("s_add_u32 s15, s15, s19")
    a.e("s_add_u32 s15, s15, s18")
    a.e("s_lshl_b32 s19, s15, 5")
    a.e("s_lshl_b32 s20, s16, 2")
    a.e("s_add_u32 s19, s19, s20")
    a.e("s_add_u32 s19, s19, s17")
    a.e("s_lshl_b32 s19, s19, 10")

def gen_op(a, layer):
    name = f"op{layer}_kernel"
    kstart(a, name)
    endl = f"op{layer}_end"
    common_prologue(a, 256, endl)
    resid_ids(a)
    xin, xout, spout, of = XF[2 * layer], XF[2 * layer + 1], SP[2 * layer + 1], OF[layer]
    a.e("s_lshl_b32 s20, s15, 5")
    a.e("s_lshl_b32 s21, s17, 3")
    a.e("s_add_u32 s20, s20, s21")
    a.e("s_lshl_b32 s20, s20, 10")
    a.e(f"s_add_u32 s20, s20, {of}")
    a.e("s_lshl_b32 s22, s16, 6")
    a.e("s_add_u32 s21, s21, s22")
    a.e("s_lshl_b32 s21, s21, 10")
    a.e(f"s_add_u32 s21, s21, {WOF}")
    a.e("s_add_u32 s22, s21, 32768")
    for s in range(8):
        o = 1024 * (s % 4)
        a.vm_issue(("b", s), f"buffer_load_dwordx4 {vr(64+4*s,4)}, v2, s[8:11], s20 offen offset:{o}")
        a.vm_issue(("a0", s), f"buffer_load_dwordx4 {vr(96+8*s,4)}, v2, s[8:11], s21 offen offset:{o}")
        a.vm_issue(("a1", s), f"buffer_load_dwordx4 {vr(100+8*s,4)}, v2, s[8:11], s22 offen offset:{o}")
        if s == 3:
            a.e("s_add_u32 s20, s20, 4096")
            a.e("s_add_u32 s21, s21, 4096")
            a.e("s_add_u32 s22, s22, 4096")
    a.e(f"s_add_u32 s22, s19, {xin}")
    a.vm_issue("res", "buffer_load_dwordx4 v[48:51], v2, s[8:11], s22 offen")
    for s in range(8):
        a.vm_wait(("a0", s))
        mfma(a, 16, 96 + 8 * s, 64 + 4 * s, None if s == 0 else 16)
        a.vm_wait(("a1", s))
        mfma(a, 32, 100 + 8 * s, 64 + 4 * s, None if s == 0 else 32)
    resid_epilogue(a, 4096, 0, xout, spout, False, endl)
    a.label(endl)
    a.e("s_endpgm")
    kernels.append((name, 160, 32))
    return (name, 256, 512, 4096 + 65536)

def gen_f2(a, layer):
    name = f"f2{layer}_kernel"
    final = layer == 1
    kstart(a, name)
    endl = f"f2{layer}_end"
    common_prologue(a, 256, endl, ["s_load_dwordx2 s[6:7], s[0:1], 72"] if final else [])
    if final:
        srd(a, 24, 6, 0x200000)
    resid_ids(a)
    xin, hf = XF[2 * layer + 1], HF[layer]
    xout, spout = (XF[2 * layer + 2], SP[2 * layer + 2]) if not final else (0, 0)
    a.e("s_mul_i32 s20, s15, 112")
    a.e("s_mul_i32 s21, s17, 28")
    a.e("s_add_u32 s20, s20, s21")
    a.e("s_lshl_b32 s20, s20, 10")
    a.e(f"s_add_u32 s20, s20, {hf}")
    a.e(f"s_mul_i32 s21, s16, 229376")
    a.e("s_lshl_b32 s28, s14, 12")
    a.e("s_add_u32 s21, s21, s28")
    a.e(f"s_add_u32 s21, s21, {W2F}")
    def dma(c):
        slot = c % 5
        a.e(f"s_add_u32 m0, s28, {slot*32768}")
        a.e(f"s_add_u32 s29, s21, {c*32768}")
        for j in range(4):
            a.vm_issue(("c", c), f"buffer_load_dwordx4 v2, s[8:11], s29 offen offset:{1024*j} lds")
    def bload(g):
        for j in range(4):
            s = 4 * g + j
            a.vm_issue(("b", s), f"buffer_load_dwordx4 {vr(64+4*s,4)}, v2, s[8:11], s20 offen offset:{1024*j}")
        a.e("s_add_u32 s20, s20, 4096")
    for c in range(5):
        dma(c)
        bload(c)
    bload(5); bload(6)
    a.e(f"s_add_u32 s22, s19, {xin}")
    a.vm_issue("res", "buffer_load_dwordx4 v[48:51], v2, s[8:11], s22 offen")
    a.e("s_lshl_b32 s22, s17, 11")
    a.e("v_add_u32 v5, s22, v2")
    a.e("v_add_u32 v6, 0x10000, v5")
    a.e("v_add_u32 v7, 0x20000, v5")
    AB = [176, 184]
    def aread(s):
        off = (s // 4 % 5) * 32768 + (s % 4) * 8192
        base = 5 + off // 65536
        off %= 65536
        b = AB[s % 2]
        a.e(f"ds_read_b128 {vr(b,4)}, v{base} offset:{off}")
        a.e(f"ds_read_b128 {vr(b+4,4)}, v{base} offset:{off+1024}")
    for s in range(28):
        c = s // 4
        if s % 4 == 0:
            a.vm_wait(("c", c))
            a.e("s_barrier")
            if 1 <= c <= 2:
                dma(c + 4)
            aread(s)
        if s % 4 != 3:
            aread(s + 1)
            a.vm_wait(("b", s), "lgkmcnt(2)")
        else:
            a.vm_wait(("b", s), "lgkmcnt(0)")
        b = AB[s % 2]
        mfma(a, 16, b, 64 + 4 * s, None if s == 0 else 16)
        mfma(a, 32, b + 4, 64 + 4 * s, None if s == 0 else 32)
    resid_epilogue(a, 65536, 131072, xout, spout, final, endl)
    a.label(endl)
    a.e("s_endpgm")
    kernels.append((name, 192, 32))
    return (name, 256, 512, 163840)

def gen_f1(a, layer):
    name = f"f1{layer}_kernel"
    kstart(a, name)
    endl = f"f1{layer}_end"
    common_prologue(a, 256, endl)
    xf, sp, hf = XF[2 * layer + 1], SP[2 * layer + 1], HF[layer]
    a.e("s_and_b32 s12, s2, 7")
    a.e("s_lshr_b32 s13, s2, 3")
    a.e("s_and_b32 s16, s13, 15")
    a.e("s_lshr_b32 s15, s13, 4")
    a.e("s_lshl_b32 s15, s15, 2")
    a.e("s_lshl_b32 s12, s12, 3")
    a.e("s_add_u32 s15, s15, s12")
    a.e("s_and_b32 s18, s14, 3")
    a.e("s_add_u32 s15, s15, s18")
    a.e("s_lshr_b32 s17, s14, 2")
    a.e("s_lshl_b32 s20, s15, 15")
    a.e(f"s_add_u32 s20, s20, {xf}")
    a.e(f"s_mul_i32 s21, s16, {33*7*1024}")
    a.e(f"s_add_u32 s21, s21, {W13F}")
    a.e("v_lshlrev_b32 v5, 3, v3")
    a.e("v_lshl_add_u32 v5, v4, 10, v5")
    a.e("s_lshl_b32 s19, s15, 11")
    a.e(f"s_add_u32 s19, s19, {sp}")
    EXL = 5 * 28672
    a.e("s_min_u32 s22, s14, 6")
    a.e("s_lshl_b32 s22, s22, 10")
    a.e(f"s_add_u32 s24, s22, {EXL}")
    a.e("s_add_u32 s22, s22, s21")
    a.e(f"s_add_u32 s22, s22, {32*7*1024}")
    a.e("s_mul_i32 s30, s15, 112")
    a.e("s_mul_i32 s31, s16, 7")
    a.e("s_add_u32 s30, s30, s31")
    a.e("s_lshl_b32 s31, s17, 2")
    a.e("s_add_u32 s30, s30, s31")
    a.e("s_lshl_b32 s30, s30, 10")
    a.e(f"s_add_u32 s30, s30, {hf}")
    lup = f"f1{layer}_up"
    a.e("s_cmp_lg_u32 s17, 0")
    a.e(f"s_cbranch_scc1 {lup}")
    for up in (0, 1):
        nt = 4 - up
        if up:
            a.label(lup)
        a.vm_reset()
        if up == 0:
            a.e("s_lshl_b32 s28, s18, 12")
        else:
            a.e("s_mul_i32 s28, s18, 3072")
            a.e("s_add_u32 s28, s28, 16384")
        a.e("s_add_u32 s21, s21, s28")
        def dma(c):
            slot = c % 5
            a.e(f"s_add_u32 m0, s28, {slot*28672}")
            a.e(f"s_add_u32 s29, s21, {c*28672}")
            for j in range(nt):
                a.vm_issue(("c", c), f"buffer_load_dwordx4 v2, s[8:11], s29 offen offset:{1024*j} lds")
        def bload(g):
            for j in range(4):
                s = 4 * g + j
                a.vm_issue(("b", s), f"buffer_load_dwordx4 {vr(112+4*s,4)}, v2, s[8:11], s20 offen offset:{1024*j}")
            a.e("s_add_u32 s20, s20, 4096")
        for c in range(5):
            dma(c)
            bload(c)
        stats_load(a, 240, 19, 5)
        a.e("s_mov_b32 m0, s24")
        a.e("s_nop 0")
        a.vm_issue("ex", "buffer_load_dwordx4 v2, s[8:11], s22 offen lds")
        bload(5); bload(6); bload(7)
        if up:
            a.e("v_add_u32 v5, 4096, v2")
        else:
            a.e("v_mov_b32 v5, v2")
        a.e("v_add_u32 v6, 0x10000, v5")
        a.e("v_add_u32 v7, 0x20000, v5")
        AB = [80, 96]
        def aread(ks):
            off = (ks // 4 % 5) * 28672 + (ks % 4) * 7168 if ks < 32 else EXL
            for t in range(nt):
                o = off + 1024 * t
                a.e(f"ds_read_b128 {vr(AB[ks%2]+4*t,4)}, v{5 + o//65536} offset:{o%65536}")
        for ks in range(33):
            c = ks // 4
            if ks % 4 == 0 and ks < 32:
                a.vm_wait([("c", c)] + (["ex"] if c == 7 else []))
                a.e("s_barrier")
                if 1 <= c <= 3:
                    dma(c + 4)
                aread(ks)
            nxt = ks + 1
            if ks < 32 and (nxt % 4 != 0 or nxt == 32):
                aread(nxt)
                lg = f"lgkmcnt({nt})"
            else:
                lg = "lgkmcnt(0)"
            if ks < 32:
                a.vm_wait(("b", ks), lg)
            else:
                a.e(f"s_waitcnt {lg}")
            if ks == 24:
                a.vm_wait("st")
                stats_sum(a, 240, 8)
                stats_finish(a, 240, 241, 248, 244, 8)
                a.e(f"v_mul_f32 v249, {f32(-LOG2E)}, v248")
                a.e("v_mul_f32 v250, v248, v248")
            breg = 112 + 4 * ks if ks < 32 else 244
            for t in range(nt):
                mfma(a, 16 + 16 * t, AB[ks % 2] + 4 * t, breg, None if ks == 0 else 16 + 16 * t)
        a.e("s_nop 7")
        a.e("s_nop 3")
        for t in range(nt):
            g, u, tm = 16 + 16 * t, 24 + 16 * t, 80
            for j in range(8):
                a.e(f"v_mul_f32 v{tm+j}, v{g+j}, v249")
            for j in range(8):
                a.e(f"v_exp_f32 v{tm+j}, v{tm+j}")
            for j in range(8):
                a.e(f"v_mul_f32 v{u+j}, v{u+j}, v250")
            for j in range(8):
                a.e(f"v_add_f32 v{tm+j}, 1.0, v{tm+j}")
            for j in range(8):
                a.e(f"v_rcp_f32 v{tm+j}, v{tm+j}")
            a.e("s_nop 0")
            for j in range(8):
                a.e(f"v_mul_f32 v{g+j}, v{g+j}, v{tm+j}")
            for j in range(8):
                a.e(f"v_mul_f32 v{g+j}, v{g+j}, v{u+j}")
            for j in range(4):
                a.e(f"v_cvt_pk_bf16_f32 v{u+j}, v{g+2*j}, v{g+2*j+1}")
            a.e(f"buffer_store_dwordx4 {vr(u,4)}, v2, s[8:11], s30 offen offset:{1024*t}")
        if up == 0:
            a.e("s_endpgm")
    a.label(endl)
    a.e("s_endpgm")
    kernels.append((name, 256, 32))
    return (name, 256, 512, EXL + 7168)

def main(out, upto=99):
    a = Asm()
    launches = []
    launches.append(gen_prep(a))
    for layer in (0, 1):
        if layer == 1:
            launches.append(gen_kv(a, 1))
        launches.append(gen_att(a, layer))
        launches.append(gen_op(a, layer))
        launches.append(gen_f1(a, layer))
        launches.append(gen_f2(a, layer))
    hdr = open("cdna_kernels/" + NAME + ".s.ref").read().split("; Override")[0]
    o = hdr
    for (n, g, b, lds) in launches[:upto]:
        o += f"; @launch kernel={n} grid=({g},1,1) block=({b},1,1) lds={lds}\n"
    o += '.amdgcn_target "amdgcn-amd-amdhsa--gfx950"\n.text\n'
    o += a.text()
    o += '.section .rodata,"a"\n'
    for (n, nv, ns) in kernels:
        o += f""".p2align 6
.amdhsa_kernel {n}
  .amdhsa_next_free_vgpr {nv}
  .amdhsa_next_free_sgpr {ns}
  .amdhsa_accum_offset {(nv+3)//4*4}
  .amdhsa_group_segment_fixed_size 0
  .amdhsa_kernarg_size 96
  .amdhsa_user_sgpr_count 2
  .amdhsa_user_sgpr_kernarg_segment_ptr 1
  .amdhsa_system_sgpr_workgroup_id_x 1
.end_amdhsa_kernel
"""
    open(out, "w").write(o)

if __name__ == "__main__":
    main(sys.argv[1] if len(sys.argv) > 1 else "cdna_kernels/" + NAME + ".s")
```

```python
import struct, sys
from asmlib import Asm, vr, sr

def f32(x):
    return "0x%08x" % struct.unpack("<I", struct.pack("<f", x))[0]

NAME = "interleave_layers__grouped_kv_mqa__glu_gated_swiglu__prompt"
WQF  = 0x000000
WKVF = 0x084000
WOF  = 0x090000
W13F = 0x110000
W2F  = 0x4B0000
XF   = [0x700000, 0x900000, 0xB00000, 0xD00000]
SP   = [0xF00000, 0xF20000, 0xF40000, 0xF60000]
KVB  = [0xF80000, 0xFC0000]
OF   = [0x1000000, 0x1200000]
HF   = [0x1400000, 0x1C00000]
WS_BYTES = 0x10000000

LOG2E = 1.4426950408889634
QSCALE = 0.25 * LOG2E
T2 = 60.0 * 60.0
VLIM = 2.0 ** 40

kernels = []
DIAG = False
FORCE_SAFE = False
GROUP_BY_BLOCK = False
DIAG_BASE = 0x4000000
FLG = 0x6F0000
def stamp(a, i):
    if DIAG:
        a.e("s_memtime s[96:97]")
        a.e("s_waitcnt lgkmcnt(0)")
        a.e(f"s_mov_b32 s{64+i}, s96")
def kend(a, endl, kidx):
    a.label(endl)
    if DIAG:
        a.e("s_waitcnt vmcnt(0)")
        stamp(a, 15)
        a.e("s_memrealtime s[96:97]")
        a.e("s_waitcnt lgkmcnt(0)")
        a.e("s_mov_b32 s81, s96")
        a.e("s_mov_b64 exec, 1")
        for i in range(20):
            a.e(f"v_mov_b32 v{16+i}, s{64+i}")
        a.e("s_lshl_b32 s12, s2, 3")
        a.e("s_add_u32 s12, s12, s14")
        a.e("s_lshl_b32 s12, s12, 7")
        a.e(f"s_add_u32 s12, s12, {DIAG_BASE + kidx * 0x80000}")
        a.e("v_mov_b32 v5, 0")
        for j in range(5):
            a.e(f"buffer_store_dwordx4 v[{16+4*j}:{19+4*j}], v5, s[8:11], s12 offen offset:{16*j}")
    a.e("s_endpgm")

def kstart(a, name):
    a.raw(f".globl {name}\n.p2align 8\n.type {name},@function\n{name}:")
    a.vm_reset()

def srd(a, s, base_lo, size):
    a.e(f"s_mov_b32 s{s}, s{base_lo}")
    a.e(f"s_mov_b32 s{s+1}, s{base_lo+1}")
    a.e(f"s_mov_b32 s{s+2}, {hex(size)}")
    a.e(f"s_mov_b32 s{s+3}, 0x20000")

def common_prologue(a, nwg, endl, extra_loads=()):
    if DIAG:
        a.e(f"s_cmp_ge_u32 s2, {nwg}")
        a.e(f"s_cbranch_scc0 {endl}_go")
        a.e("s_endpgm")
        a.label(endl + "_go")
        a.e("s_memrealtime s[96:97]")
        a.e("s_waitcnt lgkmcnt(0)")
        a.e("s_mov_b32 s80, s96")
        for i in range(1, 15):
            a.e(f"s_mov_b32 s{64+i}, 0")
        stamp(a, 0)
    else:
        a.e(f"s_cmp_ge_u32 s2, {nwg}")
        a.e(f"s_cbranch_scc1 {endl}")
    a.e("s_load_dwordx2 s[4:5], s[0:1], 88")
    for l in extra_loads:
        a.e(l)
    a.e("v_lshrrev_b32 v1, 6, v0")
    a.e("v_and_b32 v3, 31, v0")
    a.e("v_readfirstlane_b32 s14, v1")
    a.e("v_and_b32 v1, 63, v0")
    a.e("v_lshlrev_b32 v2, 4, v1")
    a.e("v_lshrrev_b32 v4, 5, v1")
    a.e("s_waitcnt lgkmcnt(0)")
    srd(a, 8, 4, WS_BYTES)

def halves_add(a, r, t):
    a.e(f"v_mov_b32 v{t}, v{r}")
    a.e("s_nop 1")
    a.e(f"v_permlane32_swap_b32 v{r}, v{t}")
    a.e("s_nop 1")
    a.e(f"v_add_f32 v{r}, v{r}, v{t}")

def halves_add2(a, r1, t1, r2, t2, op="v_add_f32"):
    a.e(f"v_mov_b32 v{t1}, v{r1}")
    a.e(f"v_mov_b32 v{t2}, v{r2}")
    a.e("s_nop 1")
    a.e(f"v_permlane32_swap_b32 v{r1}, v{t1}")
    a.e(f"v_permlane32_swap_b32 v{r2}, v{t2}")
    a.e("s_nop 1")
    a.e(f"{op} v{r1}, v{r1}, v{t1}")
    a.e(f"{op} v{r2}, v{r2}, v{t2}")

def stats_finish(a, s1, s2, rstd, bex, t):
    a.e(f"v_mul_f32 v{s1}, {f32(1/512)}, v{s1}")
    a.e(f"v_mul_f32 v{s2}, {f32(1/512)}, v{s2}")
    a.e(f"v_fma_f32 v{s2}, -v{s1}, v{s1}, v{s2}")
    a.e(f"v_max_f32 v{s2}, 0, v{s2}")
    a.e(f"v_add_f32 v{s2}, {f32(1e-5)}, v{s2}")
    a.e(f"v_rsq_f32 v{rstd}, v{s2}")
    a.e(f"v_and_b32 v{t}, 0xffff0000, v{s1}")
    a.e(f"v_sub_f32 v{t+1}, v{s1}, v{t}")
    a.e(f"v_cvt_pk_bf16_f32 v{bex}, -v{t}, -v{t}")
    a.e(f"v_cvt_pk_bf16_f32 v{bex+1}, -v{t+1}, 0")
    a.e(f"v_mov_b32 v{bex+2}, v{bex}")
    a.e(f"v_mov_b32 v{bex+3}, v{bex+1}")

def stats_load(a, dst, sp_base_s, voff):
    for j in range(4):
        a.vm_issue("st", f"buffer_load_dwordx2 {vr(dst+2*j,2)}, v{voff}, s[8:11], s{sp_base_s} offen offset:{256*j}")

def stats_sum(a, d, t):
    a.e(f"v_add_f32 v{d}, v{d}, v{d+2}")
    a.e(f"v_add_f32 v{d+1}, v{d+1}, v{d+3}")
    a.e(f"v_add_f32 v{d+4}, v{d+4}, v{d+6}")
    a.e(f"v_add_f32 v{d+5}, v{d+5}, v{d+7}")
    a.e(f"v_add_f32 v{d}, v{d}, v{d+4}")
    a.e(f"v_add_f32 v{d+1}, v{d+1}, v{d+5}")
    halves_add2(a, d, t, d + 1, t + 1)

def wave_max_dpp(a, r):
    for ctl in ("row_shr:1 row_mask:0xf bank_mask:0xf", "row_shr:2 row_mask:0xf bank_mask:0xf",
                "row_shr:4 row_mask:0xf bank_mask:0xf", "row_shr:8 row_mask:0xf bank_mask:0xf",
                "row_bcast:15 row_mask:0xa bank_mask:0xf", "row_bcast:31 row_mask:0xc bank_mask:0xf"):
        a.e("s_nop 1")
        a.e(f"v_max_f32_dpp v{r}, v{r}, v{r} {ctl}")

MFMA = "v_mfma_f32_32x32x16_bf16"
def mfma(a, d, x, y, c):
    cs = "0" if c is None else vr(c, 16)
    a.e(f"{MFMA} {vr(d,16)}, {vr(x,4)}, {vr(y,4)}, {cs}")

def kv_fin(a, kvb, PD, VT, rstd, aex, bex, s_tt, endl):
    lk = a.newlabel("kvfinV")
    mfma(a, 48, aex, bex, None)
    a.e("s_lshl_b32 s20, s14, 11")
    a.e(f"s_add_u32 s20, s20, {PD}")
    a.e("v_add_u32 v5, s20, v2")
    for src in range(4):
        a.e(f"ds_read_b128 {vr(72+8*src,4)}, v5 offset:{src*4096}")
        a.e(f"ds_read_b128 {vr(76+8*src,4)}, v5 offset:{src*4096+1024}")
    a.e("s_waitcnt lgkmcnt(0)")
    for j in range(8):
        a.e(f"v_add_f32 v{64+j}, v{72+j}, v{80+j}")
    for j in range(8):
        a.e(f"v_add_f32 v{88+j}, v{88+j}, v{96+j}")
    for j in range(8):
        a.e(f"v_add_f32 v{64+j}, v{64+j}, v{88+j}")
    for src in range(4):
        a.e(f"ds_read_b128 {vr(72+8*src,4)}, v5 offset:{(src+4)*4096}")
        a.e(f"ds_read_b128 {vr(76+8*src,4)}, v5 offset:{(src+4)*4096+1024}")
    a.e("s_waitcnt lgkmcnt(0)")
    for j in range(8):
        a.e(f"v_add_f32 v{72+j}, v{72+j}, v{80+j}")
    for j in range(8):
        a.e(f"v_add_f32 v{88+j}, v{88+j}, v{96+j}")
    for j in range(8):
        a.e(f"v_add_f32 v{64+j}, v{64+j}, v{72+j}")
    for j in range(8):
        a.e(f"v_add_f32 v{64+j}, v{64+j}, v{88+j}")
    a.e(f"s_lshl_b32 s21, s{s_tt}, 10")
    a.e(f"s_add_u32 s21, s21, {kvb}")
    a.e(f"s_lshl_b32 s22, s{s_tt}, 2")
    a.e(f"s_add_u32 s22, s22, {kvb + 131072}")
    a.e("s_cmp_eq_u32 s14, 1")
    a.e(f"s_cbranch_scc1 {lk}")
    for j in range(8):
        a.e(f"v_add_f32 v{64+j}, v{64+j}, v{48+j}")
    for j in range(8):
        a.e(f"v_mul_f32 v{64+j}, v{64+j}, v{rstd}")
    for j in range(4):
        a.e(f"v_cvt_pk_bf16_f32 v{72+j}, v{64+2*j}, v{65+2*j}")
    a.e(f"buffer_store_dwordx4 v[72:75], v2, s[8:11], s21 offen")
    a.e("v_mul_f32 v76, v64, v64")
    for j in range(1, 8):
        a.e(f"v_fmac_f32 v76, v{64+j}, v{64+j}")
    halves_add(a, 76, 77)
    wave_max_dpp(a, 76)
    a.e("v_mov_b32 v78, 0")
    a.e("s_mov_b32 s24, 0")
    a.e("s_mov_b32 s25, 0x80000000")
    a.e("s_mov_b64 exec, s[24:25]")
    a.e("buffer_store_dword v76, v78, s[8:11], s22 offen")
    a.e(f"s_branch {endl}")
    a.label(lk)
    for j in range(8):
        a.e(f"v_add_f32 v{64+j}, v{64+j}, v{56+j}")
    for j in range(8):
        a.e(f"v_mul_f32 v{64+j}, v{64+j}, v{rstd}")
    for j in range(4):
        a.e(f"v_cvt_pk_bf16_f32 v{72+j}, v{64+2*j}, v{65+2*j}")
    a.e("v_lshlrev_b32 v5, 5, v3")
    a.e("v_lshl_add_u32 v5, v4, 3, v5")
    a.e(f"ds_write_b64 v5, v[72:73] offset:{VT}")
    a.e(f"ds_write_b64 v5, v[74:75] offset:{VT+16}")
    a.e("v_lshlrev_b32 v6, 9, v4")
    a.e("v_bfe_u32 v7, v1, 4, 1")
    a.e("v_lshl_add_u32 v6, v7, 7, v6")
    a.e("v_bfe_u32 v7, v1, 2, 2")
    a.e("v_lshl_add_u32 v6, v7, 5, v6")
    a.e("v_and_b32 v7, 3, v1")
    a.e("v_lshl_add_u32 v6, v7, 3, v6")
    a.e("v_max3_f32 v76, abs(v64), abs(v65), abs(v66)")
    a.e("v_max3_f32 v76, abs(v67), abs(v68), v76")
    a.e("v_max3_f32 v76, abs(v69), abs(v70), v76")
    a.e("v_max_f32 v76, v76, abs(v71)")
    a.e("s_waitcnt lgkmcnt(0)")
    a.e(f"ds_read_b64_tr_b16 v[80:81], v6 offset:{VT}")
    a.e(f"ds_read_b64_tr_b16 v[82:83], v6 offset:{VT+256}")
    wave_max_dpp(a, 76)
    a.e("s_add_u32 s21, s21, 65536")
    a.e("s_waitcnt lgkmcnt(0)")
    a.e(f"buffer_store_dwordx4 v[80:83], v2, s[8:11], s21 offen")
    a.e("v_mov_b32 v78, 0")
    a.e("s_mov_b32 s24, 0")
    a.e("s_mov_b32 s25, 0x80000000")
    a.e("s_mov_b64 exec, s[24:25]")
    a.e("buffer_store_dword v76, v78, s[8:11], s22 offen offset:256")
    a.e(f"s_branch {endl}")

def gen_prep(a):
    name = "prep_kernel"
    kstart(a, name)
    endl = "prep_end"
    common_prologue(a, 265, endl, [
        "s_load_dwordx8 s[32:39], s[0:1], 0",
        "s_load_dwordx2 s[40:41], s[0:1], 32",
        "s_load_dwordx4 s[44:47], s[0:1], 48",
        "s_load_dwordx2 s[48:49], s[0:1], 64",
    ])
    a.e("s_mov_b32 s28, 0x3f803f80")
    a.e("s_cmp_lt_u32 s2, 64")
    a.e("s_cbranch_scc1 prep_x")
    a.e("s_cmp_lt_u32 s2, 264")
    a.e("s_cbranch_scc1 prep_w")
    for j in range(4):
        a.e(f"v_mov_b32 v{16+j}, 0")
    a.e("v_lshlrev_b32 v5, 4, v0")
    a.e(f"s_mov_b32 s12, {FLG}")
    a.e("buffer_store_dwordx4 v[16:19], v5, s[8:11], s12 offen")
    a.e(f"s_branch {endl}")
    a.label("prep_w")
    a.e("s_cmp_lt_u32 s2, 176")
    a.e("s_cbranch_scc1 prep_w13")
    a.e("s_movk_i32 s24, 1024")
    a.e("s_movk_i32 s56, 32")
    a.e("s_movk_i32 s57, 64")
    a.e("s_movk_i32 s58, 2048")
    a.e("s_movk_i32 s59, 2112")
    a.e("s_cmp_lt_u32 s2, 208")
    a.e("s_cbranch_scc0 prep_w2")
    a.e("s_sub_u32 s12, s2, 176")
    a.e("s_and_b32 s13, s12, 15")
    a.e("s_and_b32 s60, s13, 3")
    a.e("s_lshr_b32 s13, s13, 2")
    a.e("s_lshl_b32 s15, s60, 3")
    a.e("s_add_u32 s15, s15, s14")
    a.e("s_lshl_b32 s25, s15, 14")
    a.e("s_lshl_b32 s30, s13, 8")
    a.e("s_add_u32 s25, s25, s30")
    a.e("s_add_u32 s26, s25, 128")
    a.e("s_cmp_lt_u32 s12, 16")
    a.e("s_cbranch_scc0 prep_wo")
    srd(a, 16, 34, 0x80000)
    srd(a, 20, 34, 0x80000)
    a.e(f"s_mul_i32 s30, s13, {4*33}")
    a.e("s_add_u32 s31, s30, s15")
    a.e("s_lshl_b32 s50, s31, 10")
    a.e(f"s_add_u32 s50, s50, {WQF}")
    a.e(f"s_add_u32 s51, s50, {33*1024}")
    a.e(f"s_add_u32 s52, s50, {66*1024}")
    a.e(f"s_add_u32 s53, s50, {99*1024}")
    a.e("s_and_b32 s31, s14, 3")
    a.e("s_mul_i32 s31, s31, 33")
    a.e("s_add_u32 s31, s31, s30")
    a.e("s_add_u32 s31, s31, 32")
    a.e("s_lshl_b32 s54, s31, 10")
    a.e(f"s_add_u32 s54, s54, {WQF}")
    a.e("s_mov_b32 s55, 1")
    a.e("s_branch prep_wgo")
    a.label("prep_wo")
    srd(a, 16, 40, 0x80000)
    srd(a, 20, 40, 0x80000)
    a.e("s_lshl_b32 s30, s13, 7")
    a.e("s_add_u32 s30, s30, s15")
    a.e("s_lshl_b32 s50, s30, 10")
    a.e(f"s_add_u32 s50, s50, {WOF}")
    a.e(f"s_add_u32 s51, s50, {32*1024}")
    a.e(f"s_add_u32 s52, s50, {64*1024}")
    a.e(f"s_add_u32 s53, s50, {96*1024}")
    a.e("s_mov_b32 s55, 0")
    a.e("s_branch prep_wgo")
    a.label("prep_w2")
    srd(a, 16, 48, 0x1C0000)
    srd(a, 20, 48, 0x1C0000)
    a.e("s_sub_u32 s12, s2, 208")
    a.e("s_and_b32 s13, s12, 3")
    a.e("s_lshr_b32 s12, s12, 2")
    a.e("s_lshl_b32 s15, s12, 3")
    a.e("s_add_u32 s15, s15, s14")
    a.e("s_lshl_b32 s25, s15, 14")
    a.e("s_lshl_b32 s30, s13, 8")
    a.e("s_add_u32 s25, s25, s30")
    a.e("s_add_u32 s26, s25, 128")
    a.e("s_mul_i32 s30, s15, 2341")
    a.e("s_lshr_b32 s30, s30, 16")
    a.e("s_mul_i32 s31, s30, 28")
    a.e("s_sub_u32 s31, s15, s31")
    a.e("s_lshl_b32 s31, s31, 10")
    a.e(f"s_mul_i32 s30, s30, {2*28672}")
    a.e("s_add_u32 s50, s30, s31")
    a.e(f"s_mul_i32 s30, s13, {2*229376}")
    a.e("s_add_u32 s50, s50, s30")
    a.e(f"s_add_u32 s50, s50, {W2F}")
    a.e("s_add_u32 s51, s50, 28672")
    a.e("s_add_u32 s52, s50, 229376")
    a.e(f"s_add_u32 s53, s50, {229376+28672}")
    a.e("s_mov_b32 s55, 0")
    a.e("s_branch prep_wgo")
    a.label("prep_w13")
    srd(a, 16, 44, 0x1C0000)
    srd(a, 20, 46, 0x1C0000)
    a.e("s_movk_i32 s24, 3584")
    a.e("s_movk_i32 s56, 2048")
    a.e("s_movk_i32 s57, 32")
    a.e("s_movk_i32 s58, 64")
    a.e("s_movk_i32 s59, 96")
    a.e("s_sub_u32 s12, s2, 64")
    a.e("s_and_b32 s60, s12, 3")
    a.e("s_lshr_b32 s13, s12, 2")
    a.e("s_lshl_b32 s15, s60, 3")
    a.e("s_add_u32 s15, s15, s14")
    a.e(f"s_mul_i32 s25, s15, {16*3584}")
    a.e("s_lshl_b32 s30, s13, 7")
    a.e("s_add_u32 s25, s25, s30")
    a.e("s_mov_b32 s26, s25")
    def w13off(dst, s_t_expr_setup, ks_is_extra):
        a.e("s_mul_i32 s31, s30, 9363")
        a.e("s_lshr_b32 s31, s31, 16")
        a.e("s_mul_i32 s61, s31, 7")
        a.e("s_sub_u32 s61, s30, s61")
        a.e("s_mul_i32 s31, s31, 33")
        if ks_is_extra:
            a.e("s_add_u32 s31, s31, 32")
        else:
            a.e("s_add_u32 s31, s31, s15")
        a.e("s_mul_i32 s31, s31, 7")
        a.e("s_add_u32 s31, s31, s61")
        a.e(f"s_lshl_b32 s{dst}, s31, 10")
        a.e(f"s_add_u32 s{dst}, s{dst}, {W13F}")
    for t in range(4):
        a.e("s_lshl_b32 s30, s13, 2")
        if t:
            a.e(f"s_add_u32 s30, s30, {t}")
        w13off(50 + t, None, False)
    a.e("s_lshl_b32 s30, s13, 2")
    a.e("s_and_b32 s31, s14, 3")
    a.e("s_add_u32 s30, s30, s31")
    w13off(54, None, True)
    a.e("s_mov_b32 s55, 1")
    a.label("prep_wgo")
    a.e("v_lshrrev_b32 v5, 3, v1")
    a.e("v_mul_lo_u32 v5, v5, s24")
    a.e("v_and_b32 v6, 7, v1")
    a.e("v_lshl_add_u32 v5, v6, 4, v5")
    a.e("s_lshl_b32 s12, s14, 12")
    a.e("s_lshl_b32 s13, s24, 3")
    a.e("s_mov_b32 m0, s12")
    a.e("s_add_u32 s30, s25, s13")
    a.e("buffer_load_dwordx4 v5, s[16:19], s25 offen lds")
    a.e("s_add_u32 m0, s12, 1024")
    a.e("s_add_u32 s31, s26, s13")
    a.e("buffer_load_dwordx4 v5, s[16:19], s30 offen lds")
    a.e("s_add_u32 m0, s12, 2048")
    a.e("s_nop 0")
    a.e("buffer_load_dwordx4 v5, s[20:23], s26 offen lds")
    a.e("s_add_u32 m0, s12, 3072")
    a.e("s_nop 0")
    a.e("buffer_load_dwordx4 v5, s[20:23], s31 offen lds")
    a.e("v_bfe_u32 v6, v1, 2, 2")
    a.e("v_lshl_add_u32 v6, v4, 2, v6")
    a.e("v_lshlrev_b32 v6, 7, v6")
    a.e("v_and_b32 v7, 3, v1")
    a.e("v_lshl_add_u32 v6, v7, 3, v6")
    a.e("v_bfe_u32 v7, v1, 4, 1")
    a.e("v_mul_lo_u32 v7, v7, s56")
    a.e("v_add3_u32 v6, v6, v7, s12")
    a.e("v_add_u32 v7, s57, v6")
    a.e("v_add_u32 v8, s58, v6")
    a.e("v_add_u32 v9, s59, v6")
    a.e("s_waitcnt vmcnt(0)")
    for t in range(4):
        a.e(f"ds_read_b64_tr_b16 {vr(16+4*t,2)}, v{6+t}")
        a.e(f"ds_read_b64_tr_b16 {vr(18+4*t,2)}, v{6+t} offset:1024")
    for t in range(4):
        a.e(f"s_waitcnt lgkmcnt({6-2*t})")
        a.e(f"buffer_store_dwordx4 {vr(16+4*t,4)}, v2, s[8:11], s{50+t} offen")
    a.e("s_cmp_eq_u32 s55, 0")
    a.e(f"s_cbranch_scc1 {endl}")
    for t in range(4):
        a.e(f"v_mov_b32 v{32+t}, 0")
    a.e("v_mov_b32 v36, s28")
    for j in range(4):
        for t in range(4):
            a.e(f"v_dot2c_f32_bf16 v{32+t}, v{16+4*t+j}, v36")
    a.e("v_lshlrev_b32 v5, 6, v3")
    a.e("v_lshl_add_u32 v5, v4, 2, v5")
    a.e("s_lshl_b32 s12, s14, 3")
    a.e("v_add_u32 v5, s12, v5")
    a.e("s_nop 1")
    for t in range(4):
        a.e(f"ds_write_b32 v5, v{32+t} offset:{32768 + t*2048}")
    a.e("s_waitcnt lgkmcnt(0)")
    a.e("s_barrier")
    a.e("s_cmp_ge_u32 s14, 4")
    a.e(f"s_cbranch_scc1 {endl}")
    a.e("s_lshl_b32 s12, s14, 11")
    a.e("v_lshlrev_b32 v5, 6, v3")
    a.e("v_add_u32 v5, s12, v5")
    for j in range(4):
        a.e(f"ds_read_b128 {vr(40+4*j,4)}, v5 offset:{32768+16*j}")
    a.e("s_waitcnt lgkmcnt(0)")
    for j in range(8):
        a.e(f"v_add_f32 v{40+j}, v{40+j}, v{48+j}")
    for j in range(4):
        a.e(f"v_add_f32 v{40+j}, v{40+j}, v{44+j}")
    a.e("v_add_f32 v40, v40, v42")
    a.e("v_add_f32 v41, v41, v43")
    a.e("v_add_f32 v40, v40, v41")
    a.e("v_and_b32 v41, 0xffff0000, v40")
    a.e("v_sub_f32 v42, v40, v41")
    a.e("v_cvt_pk_bf16_f32 v44, v41, v42")
    a.e("v_cvt_pk_bf16_f32 v45, v41, 0")
    a.e("s_lshr_b32 s12, s60, 1")
    a.e("s_lshl_b32 s12, s12, 9")
    a.e("s_and_b32 s13, s60, 1")
    a.e("s_lshl_b32 s13, s13, 3")
    a.e("s_add_u32 s12, s12, s13")
    a.e("s_add_u32 s54, s54, s12")
    a.e("v_lshlrev_b32 v5, 4, v3")
    a.e("buffer_store_dwordx2 v[44:45], v5, s[8:11], s54 offen")
    a.e(f"s_branch {endl}")
    a.label("prep_x")
    CS2, ST, VT, IMG, PD = 0, 2048, 4096, 8192, 40960
    srd(a, 16, 32, 0x200000)
    srd(a, 20, 36, 0x4000)
    srd(a, 24, 38, 0x4000)
    a.e("v_lshlrev_b32 v5, 10, v3")
    a.e("v_lshl_add_u32 v5, v4, 4, v5")
    a.e("s_lshl_b32 s12, s2, 15")
    a.e("s_lshl_b32 s13, s14, 7")
    a.e("s_add_u32 s12, s12, s13")
    for kk in range(4):
        a.e(f"buffer_load_dwordx4 {vr(16+4*kk,4)}, v5, s[16:19], s12 offen offset:{32*kk}")
    a.e("s_lshl_b32 s12, s14, 12")
    a.e(f"s_add_u32 s12, s12, {IMG}")
    a.e("s_lshl_b32 s13, s14, 11")
    a.e("s_mov_b32 m0, s12")
    a.e("s_nop 0")
    a.e("buffer_load_dwordx4 v2, s[20:23], s13 offen lds")
    a.e("buffer_load_dwordx4 v2, s[20:23], s13 offen offset:1024 lds")
    a.e("s_add_u32 m0, s12, 2048")
    a.e("s_nop 0")
    a.e("buffer_load_dwordx4 v2, s[24:27], s13 offen lds")
    a.e("buffer_load_dwordx4 v2, s[24:27], s13 offen offset:1024 lds")
    a.e("v_bfe_u32 v6, v1, 2, 2")
    a.e("v_lshl_add_u32 v6, v4, 2, v6")
    a.e("v_lshlrev_b32 v6, 5, v6")
    a.e("v_and_b32 v7, 3, v1")
    a.e("v_lshl_add_u32 v6, v7, 3, v6")
    a.e("v_bfe_u32 v7, v1, 4, 1")
    a.e("v_lshl_add_u32 v6, v7, 11, v6")
    a.e("v_add_u32 v6, s12, v6")
    a.e("v_mov_b32 v8, 0")
    a.e("v_mov_b32 v9, 0")
    a.e("v_mov_b32 v10, 0")
    a.e("v_mov_b32 v11, s28")
    a.e("s_waitcnt vmcnt(4)")
    for kk in range(4):
        a.e(f"v_permlane32_swap_b32 v{16+4*kk}, v{18+4*kk}")
        a.e(f"v_permlane32_swap_b32 v{17+4*kk}, v{19+4*kk}")
    a.e("s_lshl_b32 s12, s2, 15")
    a.e("s_lshl_b32 s13, s14, 12")
    a.e("s_add_u32 s12, s12, s13")
    a.e(f"s_add_u32 s12, s12, {XF[0]}")
    for kk in range(4):
        a.e(f"buffer_store_dwordx4 {vr(16+4*kk,4)}, v2, s[8:11], s12 offen offset:{1024*kk}")
    for j in range(16):
        a.e(f"v_dot2c_f32_bf16 v8, v{16+j}, v11")
        a.e(f"v_dot2c_f32_bf16 v9, v{16+j}, v{16+j}")
    a.e("s_waitcnt vmcnt(4)")
    for kk in range(4):
        a.e(f"ds_read_b64_tr_b16 {vr(32+4*kk,2)}, v6 offset:{512*kk}")
        a.e(f"ds_read_b64_tr_b16 {vr(34+4*kk,2)}, v6 offset:{512*kk+256}")
    halves_add2(a, 8, 12, 9, 13)
    a.e("v_lshlrev_b32 v5, 3, v3")
    a.e("s_lshl_b32 s12, s2, 11")
    a.e("s_lshl_b32 s13, s14, 8")
    a.e("s_add_u32 s12, s12, s13")
    a.e(f"s_add_u32 s12, s12, {SP[0]}")
    a.e("buffer_store_dwordx2 v[8:9], v5, s[8:11], s12 offen")
    a.e("v_lshlrev_b32 v5, 6, v3")
    a.e("s_lshl_b32 s13, s14, 3")
    a.e("v_add_u32 v7, s13, v5")
    a.e(f"v_add_u32 v7, {ST}, v7")
    a.e("ds_write_b64 v7, v[8:9]")
    a.e("s_waitcnt lgkmcnt(1)")
    for kk in range(4):
        mfma(a, 48, 32 + 4 * kk, 16 + 4 * kk, None if kk == 0 else 48)
    for j in range(16):
        a.e(f"v_dot2c_f32_bf16 v10, v{32+j}, v11")
    a.e("v_lshl_add_u32 v7, v4, 2, v5")
    a.e("v_add_u32 v7, s13, v7")
    a.e(f"v_add_u32 v7, {CS2}, v7")
    a.e("s_nop 1")
    a.e("ds_write_b32 v7, v10")
    lnk = a.newlabel("nowkv")
    a.e("s_cmp_lg_u32 s2, 0")
    a.e(f"s_cbranch_scc1 {lnk}")
    a.e("s_lshl_b32 s12, s14, 12")
    a.e(f"s_add_u32 s12, s12, {WKVF}")
    for kk in range(4):
        a.e(f"buffer_store_dwordx4 {vr(32+4*kk,4)}, v2, s[8:11], s12 offen offset:{1024*kk}")
    a.label(lnk)
    a.e("s_lshl_b32 s12, s14, 12")
    a.e(f"s_add_u32 s12, s12, {PD}")
    a.e("v_add_u32 v7, s12, v2")
    a.e("s_nop 4")
    for j in range(4):
        a.e(f"ds_write_b128 v7, {vr(48+4*j,4)} offset:{1024*j}")
    a.e("s_waitcnt lgkmcnt(0)")
    a.e("s_barrier")
    a.e("s_cmp_ge_u32 s14, 2")
    a.e(f"s_cbranch_scc1 {endl}")
    a.e(f"v_add_u32 v7, {CS2}, v5")
    for j in range(4):
        a.e(f"ds_read_b128 {vr(16+4*j,4)}, v7 offset:{ST-CS2+16*j}")
    for j in range(4):
        a.e(f"ds_read_b128 {vr(32+4*j,4)}, v7 offset:{16*j}")
    a.e("s_waitcnt lgkmcnt(4)")
    for j in range(8):
        a.e(f"v_add_f32 v{16+j}, v{16+j}, v{24+j}")
    for j in range(4):
        a.e(f"v_add_f32 v{16+j}, v{16+j}, v{20+j}")
    a.e("v_add_f32 v16, v16, v18")
    a.e("v_add_f32 v17, v17, v19")
    stats_finish(a, 16, 17, 8, 104, 18)
    a.e("s_waitcnt lgkmcnt(0)")
    for j in range(8):
        a.e(f"v_add_f32 v{32+j}, v{32+j}, v{40+j}")
    for j in range(4):
        a.e(f"v_add_f32 v{32+j}, v{32+j}, v{36+j}")
    a.e("v_add_f32 v32, v32, v34")
    a.e("v_add_f32 v33, v33, v35")
    a.e("v_add_f32 v32, v32, v33")
    a.e("v_cmp_eq_u32 vcc, 0, v4")
    a.e("s_nop 1")
    a.e("v_cndmask_b32 v32, 0, v32, vcc")
    a.e("v_and_b32 v33, 0xffff0000, v32")
    a.e("v_sub_f32 v34, v32, v33")
    a.e("v_cvt_pk_bf16_f32 v108, v33, v34")
    a.e("v_cvt_pk_bf16_f32 v109, v33, 0")
    a.e("v_mov_b32 v110, 0")
    a.e("v_mov_b32 v111, 0")
    lnk = a.newlabel("noaex")
    a.e("s_add_u32 s12, s2, s14")
    a.e("s_cmp_lg_u32 s12, 0")
    a.e(f"s_cbranch_scc1 {lnk}")
    a.e(f"s_mov_b32 s12, {WKVF + 32*1024}")
    a.e("buffer_store_dwordx4 v[108:111], v2, s[8:11], s12 offen")
    a.label(lnk)
    a.e("s_nop 1")
    kv_fin(a, KVB[0], PD, VT, 8, 108, 104, 2, endl)
    kend(a, endl, len(kernels))
    kernels.append((name, 112, 64))
    return (name, 265, 512, PD + 32768)

SA, SB, OA, OB = 16, 32, 48, 64
QA, QB, P0, P1 = 80, 84, 88, 92
KB = [96, 100]
VB = [[104, 108], [112, 116]]
W2R = 144
NMA, NMB = 144, 160
XR = 131072
ACH = 28672
F1_EX = 3 * ACH
F1_B = 98304
OS = 98304
OP_STL = 94208

def xbar(a, layer, k, pre=None, poll=True, endl=None):
    L = lambda p: f"xb{layer}_{k}_{p}"
    if pre is not None:
        a.e("s_cmp_eq_u32 s14, 0")
        a.e(f"s_cbranch_scc1 {L('w0')}")
        n = pre()
        a.e(f"s_waitcnt vmcnt({n}) lgkmcnt(0)")
        a.e("s_barrier")
        a.e(f"s_branch {L('rel')}")
        a.label(L('w0'))
        a.e("s_waitcnt vmcnt(0) lgkmcnt(0)")
        a.e("s_barrier")
    else:
        a.e("s_waitcnt vmcnt(0) lgkmcnt(0)")
        a.e("s_barrier")
        a.e("s_cmp_lg_u32 s14, 0")
        a.e(f"s_cbranch_scc1 {L('rel') if poll else endl}")
    a.vm_reset()
    if k == 0:
        a.e("s_mov_b32 s93, 0x400000")
        a.label(L('chk'))
        a.e("v_mov_b32 v5, 0")
        a.e("buffer_load_dwordx2 v[6:7], v5, s[88:91], s94 offen sc1")
        a.e("s_waitcnt vmcnt(0)")
        a.e("v_readfirstlane_b32 s22, v6")
        a.e("v_readfirstlane_b32 s23, v7")
        a.e("s_mov_b64 s[24:25], 32")
        a.e("s_lshl_b64 s[24:25], s[24:25], s95")
        a.e("s_mov_b32 s92, 0")
        a.e("s_cmp_eq_u64 s[22:23], s[24:25]")
        if not FORCE_SAFE:
            a.e(f"s_cbranch_scc1 {L('chkok')}")
        a.e("s_mov_b32 s92, 1")
        a.e("s_mov_b32 s24, 0")
        for f in range(8):
            a.e("s_and_b32 s25, s22, 63")
            a.e("s_add_u32 s24, s24, s25")
            a.e("s_lshr_b64 s[22:23], s[22:23], 6")
        a.e("s_cmp_eq_u32 s24, 32")
        a.e(f"s_cbranch_scc1 {L('chkok')}")
        a.e("s_sleep 2")
        a.e("s_sub_u32 s93, s93, 1")
        a.e("s_cmp_lg_u32 s93, 0")
        a.e(f"s_cbranch_scc1 {L('chk')}")
        a.label(L('chkok'))
    a.e(f"s_add_u32 s22, s98, {128*k}")
    a.e("v_lshlrev_b32 v5, 2, v3")
    a.e("v_mov_b32 v6, 1")
    a.e("v_mov_b32 v7, s99")
    a.e("s_mov_b64 exec, 1")
    a.e("s_cmp_lg_u32 s92, 0")
    a.e(f"s_cbranch_scc1 {L('safe')}")
    a.e("buffer_store_dword v6, v7, s[8:11], s22 offen")
    a.e(f"s_branch {L('poll0')}")
    a.label(L('safe'))
    a.e("buffer_wbl2 sc1")
    a.e("s_waitcnt vmcnt(0)")
    a.e("buffer_store_dword v6, v7, s[8:11], s22 offen sc1")
    a.label(L('poll0'))
    a.e("s_mov_b64 exec, -1")
    if not poll:
        a.e(f"s_branch {endl}")
        return
    a.e("s_mov_b32 s93, 0x400000")
    a.label(L('poll'))
    a.e("buffer_load_dword v6, v5, s[8:11], s22 offen sc1")
    a.e("s_sub_u32 s93, s93, 1")
    a.e("s_waitcnt vmcnt(0)")
    a.e("v_cmp_eq_u32 vcc, 0, v6")
    a.e("s_cmp_eq_u32 s93, 0")
    a.e(f"s_cbranch_scc1 {L('done')}")
    a.e(f"s_cbranch_vccnz {L('poll')}")
    a.label(L('done'))
    a.e("s_cmp_eq_u32 s92, 0")
    a.e(f"s_cbranch_scc1 {L('rel')}")
    a.e("buffer_inv sc1")
    a.e("s_waitcnt vmcnt(0)")
    a.label(L('rel'))
    a.e("s_barrier")

def att_iter(a, i, slow, hook):
    E = lambda r: a.e(f"v_exp_f32 v{r}, v{r}")
    def C(p, s):
        for j in range(4):
            a.e(f"v_cvt_pk_bf16_f32 v{p+j}, v{s+2*j}, v{s+2*j+1}")
    ca = NMA if slow else None
    cb = NMB if slow else None
    vcur, vprev = VB[i % 2], VB[(i + 1) % 2]
    E(SA); E(SA + 1)
    if i > 0:
        mfma(a, OB, vprev[1], P1, OB)
    for r in range(2, 6): E(SA + r)
    mfma(a, SB, KB[i % 2], QB, cb)
    a.e("s_waitcnt lgkmcnt(0)")
    hook(i)
    if i + 2 < 32:
        a.e(f"ds_read_b128 {vr(KB[i%2],4)}, v5 offset:{(i+2)*1024}")
    if i + 1 < 32:
        a.e("s_mov_b64 exec, s[20:21]")
        a.e(f"ds_read_b128 {vr(vprev[0],4)}, v6 offset:{(i+1)*1024}")
        a.e(f"ds_read_b128 {vr(vprev[1],4)}, v6 offset:{(i+1)*1024+512}")
        a.e("s_mov_b64 exec, -1")
    E(SA + 6); E(SA + 7)
    C(P0, SA)
    E(SA + 8); E(SA + 9)
    mfma(a, OA, vcur[0], P0, OA if i > 0 else None)
    for r in range(10, 16): E(SA + r)
    C(P1, SA + 8)
    E(SB); E(SB + 1)
    mfma(a, OA, vcur[1], P1, OA)
    for r in range(2, 6): E(SB + r)
    if i + 1 < 32:
        mfma(a, SA, KB[(i + 1) % 2], QA, ca)
    E(SB + 6); E(SB + 7)
    C(P0, SB)
    E(SB + 8); E(SB + 9)
    mfma(a, OB, vcur[0], P0, OB if i > 0 else None)
    for r in range(10, 16): E(SB + r)
    C(P1, SB + 8)

def phase_att(a, layer):
    xf, sp, kvb, of = XF[2 * layer], SP[2 * layer], KVB[layer], OF[layer]
    a.e("s_lshl_b32 s15, s12, 3")
    a.e("s_lshr_b32 s16, s13, 2")
    a.e("s_add_u32 s15, s15, s16")
    a.e("s_and_b32 s16, s13, 3")
    a.e("s_lshl_b32 s16, s16, 2")
    a.e("s_and_b32 s18, s14, 3")
    a.e("s_add_u32 s16, s16, s18")
    a.e("s_lshr_b32 s17, s14, 2")
    a.e("s_lshl_b32 s22, s14, 12")
    a.e(f"s_add_u32 m0, s22, {XR}")
    a.e("s_lshl_b32 s23, s15, 15")
    a.e("s_add_u32 s23, s23, s22")
    a.e(f"s_add_u32 s23, s23, {xf}")
    for j in range(4):
        a.vm_issue("x", f"buffer_load_dwordx4 v2, s[8:11], s23 offen offset:{1024*j} lds")
    a.e("s_mul_i32 s22, s16, 33")
    a.e("s_lshl_b32 s23, s17, 4")
    a.e("s_add_u32 s24, s22, 32")
    a.e("s_add_u32 s22, s22, s23")
    a.e("s_lshl_b32 s22, s22, 10")
    a.e(f"s_add_u32 s22, s22, {WQF}")
    a.e("s_lshl_b32 s24, s24, 10")
    a.e(f"s_add_u32 s24, s24, {WQF}")
    def wq(i):
        a.vm_issue(("a", i), f"buffer_load_dwordx4 {vr(144+4*i,4)}, v2, s[8:11], s22 offen offset:{1024*(i%4)}")
        if i % 4 == 3:
            a.e("s_add_u32 s22, s22, 4096")
    for i in range(4):
        wq(i)
    a.e("v_lshlrev_b32 v5, 3, v3")
    a.e("v_lshl_add_u32 v5, v4, 10, v5")
    a.e("s_lshl_b32 s19, s15, 11")
    a.e(f"s_add_u32 s19, s19, {sp}")
    stats_load(a, 40, 19, 5)
    a.e("v_lshlrev_b32 v6, 2, v1")
    a.e(f"s_mov_b32 s19, {kvb + 131072}")
    a.vm_issue("kn", "buffer_load_dword v120, v6, s[8:11], s19 offen")
    a.vm_issue("kn", "buffer_load_dword v121, v6, s[8:11], s19 offen offset:256")
    a.vm_issue("aex", "buffer_load_dwordx4 v[32:35], v2, s[8:11], s24 offen")
    for i in range(4, 8):
        wq(i)
    a.e("s_lshl_b32 s26, s17, 15")
    a.e("s_lshl_b32 s27, s18, 11")
    a.e("s_add_u32 s26, s26, s27")
    def dma_chunk(tag):
        a.e("s_mov_b32 m0, s26")
        a.e(f"s_add_u32 s27, s26, {kvb}")
        a.vm_issue(tag, "buffer_load_dwordx4 v2, s[8:11], s27 offen lds")
        a.vm_issue(tag, "buffer_load_dwordx4 v2, s[8:11], s27 offen offset:1024 lds")
        a.e("s_add_u32 m0, s26, 65536")
        a.e(f"s_add_u32 s27, s26, {kvb + 65536}")
        a.vm_issue(tag, "buffer_load_dwordx4 v2, s[8:11], s27 offen lds")
        a.vm_issue(tag, "buffer_load_dwordx4 v2, s[8:11], s27 offen offset:1024 lds")
        a.e("s_add_u32 s26, s26, 8192")
    a.e("s_mov_b32 s20, 0xffff0000")
    a.e("s_mov_b32 s21, 0xffff0000")
    a.e("v_and_b32 v7, 27, v3")
    a.e("v_cmp_eq_u32 vcc, 0, v7")
    a.e("v_mov_b32 v7, 0x3f803f80")
    a.e("s_lshl_b32 s28, s17, 14")
    a.e("v_cndmask_b32 v7, 0, v7, vcc")
    for r in range(104, 120):
        a.e(f"v_mov_b32 v{r}, v7")
    a.e(f"s_add_u32 s28, s28, {XR}")
    a.e("v_add_u32 v10, s28, v2")
    a.e("s_lshl_b32 s28, s17, 15")
    a.e("v_add_u32 v5, s28, v2")
    a.e("v_and_b32 v6, 15, v1")
    a.e("v_lshlrev_b32 v6, 4, v6")
    a.e("v_lshl_add_u32 v6, v4, 8, v6")
    a.e("s_add_u32 s28, s28, 65536")
    a.e("v_add_u32 v6, s28, v6")
    a.e("s_lshr_b32 s28, s14, 1")
    a.e("s_lshl_b32 s28, s28, 15")
    a.e("s_and_b32 s29, s14, 1")
    a.e("s_lshl_b32 s29, s29, 12")
    a.e("s_add_u32 s28, s28, s29")
    a.e("s_add_u32 s28, s28, 24576")
    a.e("v_add_u32 v8, s28, v2")
    a.e("s_xor_b32 s28, s28, 65536")
    a.e("v_add_u32 v9, s28, v2")
    a.vm_wait("x")
    a.e("s_barrier")
    stamp(a, 1)
    XB = [48, 52, 56, 60]
    def xr(i):
        a.e(f"ds_read_b128 {vr(XB[i%4],4)}, v10 offset:{1024*i}")
    xr(0); xr(1); xr(2)
    for i in range(8, 16):
        wq(i)
    dma_chunk("c0")
    a.vm_wait("aex")
    stats_sum(a, 40, 12)
    stats_finish(a, 40, 41, 122, 36, 12)
    a.e(f"v_mul_f32 v122, {f32(QSCALE)}, v122")
    wave_max_dpp(a, 120)
    a.e(f"v_mov_b32 v12, {f32(VLIM)}")
    a.e("v_cmp_nle_f32 s[30:31], v121, v12")
    a.e("v_readlane_b32 s29, v120, 63")
    for i in range(16):
        if i + 3 < 16:
            xr(i + 3)
        a.vm_wait(("a", i), f"lgkmcnt({min(3, 15 - i)})")
        mfma(a, SA, 144 + 4 * i, XB[i % 4], None if i == 0 else SA)
    lsk = a.newlabel("noex")
    a.e("s_cmp_lg_u32 s17, 0")
    a.e(f"s_cbranch_scc1 {lsk}")
    mfma(a, SA, 32, 36, SA)
    a.label(lsk)
    stamp(a, 2)
    dma_chunk("c1")
    a.e("s_nop 3")
    for j in range(4):
        a.e(f"ds_write_b128 v8, {vr(SA+4*j,4)} offset:{1024*j}")
    a.vm_wait("c0", "lgkmcnt(0)")
    a.e("s_barrier")
    for j in range(4):
        a.e(f"ds_read_b128 {vr(SB+4*j,4)}, v9 offset:{1024*j}")
    a.e(f"ds_read_b128 {vr(KB[0],4)}, v5")
    a.e(f"ds_read_b128 {vr(KB[1],4)}, v5 offset:1024")
    a.e("s_mov_b64 exec, s[20:21]")
    a.e(f"ds_read_b128 {vr(VB[0][0],4)}, v6")
    a.e(f"ds_read_b128 {vr(VB[0][1],4)}, v6 offset:512")
    a.e("s_mov_b64 exec, -1")
    a.e("s_lshl_b32 s28, s14, 12")
    a.e(f"s_add_u32 s28, s28, {XR}")
    a.e("v_add_u32 v8, s28, v2")
    a.e("s_xor_b32 s28, s28, 16384")
    a.e("v_add_u32 v9, s28, v2")
    a.e("s_and_b32 s32, s13, 7")
    a.e("s_lshl_b32 s32, s32, 3")
    a.e("s_add_u32 s32, s32, s14")
    a.e(f"s_mul_i32 s32, s32, {28*1024}")
    a.e(f"s_add_u32 s32, s32, {W2F}")
    a.e("s_waitcnt lgkmcnt(4)")
    for j in range(16):
        a.e(f"v_add_f32 v{SA+j}, v{SA+j}, v{SB+j}")
    for j in range(16):
        a.e(f"v_mul_f32 v{SA+j}, v{SA+j}, v122")
    for j in range(8):
        a.e(f"v_cvt_pk_bf16_f32 v{QA+j}, v{SA+2*j}, v{SA+2*j+1}")
    a.e(f"v_mul_f32 v10, v{SA}, v{SA}")
    a.e(f"v_mul_f32 v11, v{SA+8}, v{SA+8}")
    for j in range(1, 8):
        a.e(f"v_fmac_f32 v10, v{SA+j}, v{SA+j}")
        a.e(f"v_fmac_f32 v11, v{SA+8+j}, v{SA+8+j}")
    a.e("s_waitcnt lgkmcnt(0)")
    mfma(a, SA, KB[0], QA, None)
    halves_add2(a, 10, 12, 11, 13)
    a.e("v_max_f32 v10, v10, v11")
    a.e("v_mul_f32 v10, s29, v10")
    a.e(f"v_mov_b32 v11, {f32(T2)}")
    a.e("v_cmp_nle_f32 vcc, v10, v11")
    a.e("s_or_b64 s[30:31], s[30:31], vcc")
    a.e("s_cmp_lg_u64 s[30:31], 0")
    lslow, lepi = f"att{layer}_slow", f"att{layer}_epi"
    a.e(f"s_cbranch_scc1 {lslow}")
    stamp(a, 3)
    vm_at_branch = list(a.vm)
    def w2load(j):
        a.vm_issue(("w2", j), f"buffer_load_dwordx4 {vr(W2R+4*j,4)}, v2, s[8:11], s32 offen offset:{1024*(j%4)}")
        if j % 4 == 3:
            a.e("s_add_u32 s32, s32, 4096")
    def main_loop(slow):
        def hook(i):
            if i == 1:
                lr = a.newlabel("reg")
                a.e("s_cmp_lg_u32 s14, 0")
                a.e(f"s_cbranch_scc1 {lr}")
                a.e("s_mov_b64 s[24:25], 1")
                a.e("s_lshl_b64 s[24:25], s[24:25], s95")
                a.e("v_mov_b32 v12, s24")
                a.e("v_mov_b32 v13, s25")
                a.e("v_mov_b32 v14, 0")
                a.e("s_mov_b64 exec, 1")
                a.e("buffer_atomic_add_x2 v[12:13], v14, s[88:91], s94 offen")
                a.e("s_mov_b64 exec, -1")
                a.label(lr)
            if i in (6, 14, 22):
                c = (i + 2) // 8
                a.vm_wait(f"c{c}")
                a.e("s_barrier")
                if c < 3:
                    dma_chunk(f"c{c+1}")
            if not slow and i < 28:
                w2load(i)
        for i in range(32):
            att_iter(a, i, slow, hook)
        a.e("s_nop 1")
    main_loop(False)
    a.label(lepi)
    mfma(a, OB, VB[1][1], P1, OB)
    stamp(a, 4)
    a.e("s_and_b32 s22, s13, 7")
    a.e("s_lshl_b32 s22, s22, 1")
    a.e("s_and_b32 s23, s14, 1")
    a.e("s_add_u32 s22, s22, s23")
    a.e("s_lshl_b32 s22, s22, 2")
    a.e("s_lshr_b32 s23, s14, 1")
    a.e("s_add_u32 s22, s22, s23")
    a.e("s_lshl_b32 s22, s22, 13")
    a.e(f"s_add_u32 s22, s22, {WOF}")
    a.e("s_add_u32 s23, s22, 4096")
    for j in range(8):
        a.vm_issue("wo", f"buffer_load_dwordx4 {vr(96+4*j,4)}, v2, s[8:11], s{22 + j//4} offen offset:{1024*(j%4)}")
    lb = a.newlabel("epib")
    lj = a.newlabel("epij")
    a.e("s_cmp_lg_u32 s17, 0")
    a.e(f"s_cbranch_scc1 {lb}")
    a.e(f"ds_write_b128 v8, {vr(OB+8,4)}")
    a.e(f"ds_write_b128 v8, {vr(OB+12,4)} offset:1024")
    a.e(f"ds_write_b32 v8, v{OB} offset:2048")
    a.e(f"s_branch {lj}")
    a.label(lb)
    a.e(f"ds_write_b128 v8, {vr(OA+8,4)}")
    a.e(f"ds_write_b128 v8, {vr(OA+12,4)} offset:1024")
    a.e(f"ds_write_b32 v8, v{OA} offset:2048")
    a.e("s_waitcnt lgkmcnt(0)")
    a.e(f"v_mov_b32 v{OA}, v{OB}")
    for j in range(8, 16):
        a.e(f"v_mov_b32 v{OA+j}, v{OB+j}")
    a.label(lj)
    a.e("s_waitcnt lgkmcnt(0)")
    a.e("s_barrier")
    a.e(f"ds_read_b32 v{SA}, v9 offset:2048")
    a.e(f"ds_read_b128 {vr(SA+8,4)}, v9")
    a.e(f"ds_read_b128 {vr(SA+12,4)}, v9 offset:1024")
    a.e("s_lshl_b32 s22, s15, 5")
    a.e("s_lshl_b32 s23, s16, 1")
    a.e("s_add_u32 s22, s22, s23")
    a.e("s_add_u32 s22, s22, s17")
    a.e("s_lshl_b32 s22, s22, 10")
    a.e(f"s_add_u32 s22, s22, {of}")
    a.e("s_waitcnt lgkmcnt(2)")
    a.e(f"v_add_f32 v{OA}, v{OA}, v{SA}")
    a.e(f"v_rcp_f32 v{OA}, v{OA}")
    a.e("s_waitcnt lgkmcnt(0)")
    for j in range(8, 16):
        a.e(f"v_add_f32 v{OA+j}, v{OA+j}, v{SA+j}")
    for j in range(8, 16):
        a.e(f"v_mul_f32 v{OA+j}, v{OA+j}, v{OA}")
    for j in range(4):
        a.e(f"v_cvt_pk_bf16_f32 v{P0+j}, v{OA+8+2*j}, v{OA+9+2*j}")
    a.e(f"buffer_store_dwordx4 {vr(P0,4)}, v2, s[8:11], s22 offen")
    def slow_path():
        a.label(lslow)
        a.e("s_waitcnt vmcnt(0)")
        a.e("v_mov_b32 v10, 0xff800000")
        a.e("v_mov_b32 v11, 0xff800000")
        a.e(f"s_mov_b32 s22, {kvb}")
        lm = a.newlabel("maxloop")
        a.label(lm)
        a.e("buffer_load_dwordx4 v[12:15], v2, s[8:11], s22 offen")
        a.e("s_waitcnt vmcnt(0)")
        mfma(a, SA, 12, QA, None)
        mfma(a, SB, 12, QB, None)
        a.e("s_nop 15")
        for j in range(8):
            a.e(f"v_max3_f32 v10, v{SA+2*j}, v{SA+2*j+1}, v10")
            a.e(f"v_max3_f32 v11, v{SB+2*j}, v{SB+2*j+1}, v11")
        a.e("s_add_u32 s22, s22, 1024")
        a.e(f"s_cmp_lt_u32 s22, {kvb + 65536}")
        a.e(f"s_cbranch_scc1 {lm}")
        halves_add2(a, 10, 12, 11, 13, op="v_max_f32")
        for j in range(16):
            a.e(f"v_sub_f32 v{NMA+j}, 0, v10")
            a.e(f"v_sub_f32 v{NMB+j}, 0, v11")
        a.e("s_nop 1")
        mfma(a, SA, KB[0], QA, NMA)
        a.e("s_nop 11")
        a.vm = []
        main_loop(True)
        a.e("s_nop 15")
        for j in range(28):
            w2load(j)
        a.e("s_waitcnt vmcnt(0)")
        a.e(f"s_branch {lepi}")
        a.vm = []
    return slow_path

def f1_ids(a):
    a.e("s_and_b32 s33, s13, 15")
    a.e(f"s_mul_i32 s33, s33, {33*7*1024}")
    a.e(f"s_add_u32 s33, s33, {W13F}")

def f1_pre(a, chunks, extra):
    n = 0
    a.e("s_sub_u32 s22, s14, 1")
    a.e("s_lshl_b32 s23, s22, 12")
    a.e("s_add_u32 s24, s23, s33")
    for c in chunks:
        a.e(f"s_add_u32 m0, s23, {(c % 3) * ACH}")
        a.e(f"s_add_u32 s25, s24, {c * ACH}")
        for j in range(4):
            a.e(f"buffer_load_dwordx4 v2, s[8:11], s25 offen offset:{1024*j} lds")
            n += 1
    if extra:
        a.e("s_lshl_b32 s23, s22, 10")
        a.e(f"s_add_u32 m0, s23, {F1_EX}")
        a.e("s_add_u32 s25, s23, s33")
        a.e(f"s_add_u32 s25, s25, {32*7*1024}")
        a.e("buffer_load_dwordx4 v2, s[8:11], s25 offen lds")
        n += 1
    return n

def resid_ids(a):
    a.e("s_and_b32 s18, s14, 1")
    a.e("s_lshr_b32 s17, s14, 1")
    a.e("s_and_b32 s16, s13, 7")
    a.e("s_lshr_b32 s15, s13, 3")
    a.e("s_lshl_b32 s15, s15, 1")
    a.e("s_lshl_b32 s19, s12, 3")
    a.e("s_add_u32 s15, s15, s19")
    a.e("s_lshr_b32 s20, s17, 1")
    a.e("s_add_u32 s20, s20, s15")
    a.e("s_lshl_b32 s21, s16, 2")
    a.e("s_lshl_b32 s19, s18, 1")
    a.e("s_add_u32 s21, s21, s19")
    a.e("s_and_b32 s19, s17, 1")
    a.e("s_add_u32 s21, s21, s19")
    a.e("s_lshl_b32 s19, s20, 5")
    a.e("s_add_u32 s19, s19, s21")
    a.e("s_lshl_b32 s19, s19, 10")

def resid_epilogue(a, RED, STL, xout, spout, final, pre_barrier, st):
    a.e("s_lshl_b32 s22, s18, 15")
    a.e(f"s_add_u32 s22, s22, {RED}")
    a.e("s_lshl_b32 s23, s17, 11")
    a.e("s_add_u32 s23, s23, s22")
    a.e("v_add_u32 v8, s23, v2")
    a.e("s_lshl_b32 s23, s17, 13")
    a.e("s_add_u32 s23, s23, s22")
    a.e("v_add_u32 v9, s23, v2")
    stamp(a, st)
    if pre_barrier:
        a.e("s_barrier")
    a.e("s_nop 5")
    for d in range(4):
        a.e(f"ds_write_b128 v8, {vr(16+8*d,4)} offset:{d*8192}")
        a.e(f"ds_write_b128 v8, {vr(20+8*d,4)} offset:{d*8192+1024}")
    a.e("s_waitcnt lgkmcnt(0)")
    a.e("s_barrier")
    for s in range(4):
        a.e(f"ds_read_b128 {vr(16+8*s,4)}, v9 offset:{s*2048}")
        a.e(f"ds_read_b128 {vr(20+8*s,4)}, v9 offset:{s*2048+1024}")
    a.vm_wait("res")
    for j in range(4):
        a.e(f"v_lshlrev_b32 v{56+2*j}, 16, v{48+j}")
        a.e(f"v_and_b32 v{57+2*j}, 0xffff0000, v{48+j}")
    a.e("s_waitcnt lgkmcnt(4)")
    for j in range(8):
        a.e(f"v_add_f32 v{16+j}, v{16+j}, v{24+j}")
    for j in range(8):
        a.e(f"v_add_f32 v{16+j}, v{16+j}, v{56+j}")
    a.e("s_waitcnt lgkmcnt(0)")
    for j in range(8):
        a.e(f"v_add_f32 v{32+j}, v{32+j}, v{40+j}")
    for j in range(8):
        a.e(f"v_add_f32 v{16+j}, v{16+j}, v{32+j}")
    for j in range(4):
        a.e(f"v_cvt_pk_bf16_f32 v{24+j}, v{16+2*j}, v{17+2*j}")
    if final:
        a.e("v_lshlrev_b32 v8, 10, v3")
        a.e("v_lshl_add_u32 v8, v4, 4, v8")
        a.e("v_permlane32_swap_b32 v24, v26")
        a.e("v_permlane32_swap_b32 v25, v27")
        a.e("s_lshl_b32 s22, s20, 15")
        a.e("s_lshl_b32 s23, s21, 5")
        a.e("s_add_u32 s22, s22, s23")
        a.e("buffer_store_dwordx4 v[24:27], v8, s[84:87], s22 offen")
        return
    a.e(f"s_add_u32 s22, s19, {xout}")
    a.e("buffer_store_dwordx4 v[24:27], v2, s[8:11], s22 offen")
    a.e("v_add_f32 v28, v16, v17")
    a.e("v_mul_f32 v29, v16, v16")
    a.e("v_fmac_f32 v29, v17, v17")
    for j in range(2, 8):
        a.e(f"v_add_f32 v28, v28, v{16+j}")
        a.e(f"v_fmac_f32 v29, v{16+j}, v{16+j}")
    a.e("v_lshlrev_b32 v8, 6, v3")
    a.e("v_lshl_add_u32 v8, v4, 3, v8")
    a.e("s_lshr_b32 s22, s17, 1")
    a.e("s_lshl_b32 s22, s22, 11")
    a.e("s_and_b32 s23, s21, 3")
    a.e("s_lshl_b32 s23, s23, 4")
    a.e("s_add_u32 s22, s22, s23")
    a.e(f"s_add_u32 s22, s22, {STL}")
    a.e("v_add_u32 v8, s22, v8")
    a.e("ds_write_b64 v8, v[28:29]")
    a.e("s_waitcnt lgkmcnt(0)")
    a.e("s_barrier")
    ls = a.newlabel("nost")
    a.e("s_cmp_lg_u32 s14, 0")
    a.e(f"s_cbranch_scc1 {ls}")
    a.e("v_lshlrev_b32 v8, 6, v1")
    a.e(f"v_add_u32 v8, {STL}, v8")
    for j in range(4):
        a.e(f"ds_read_b128 {vr(32+4*j,4)}, v8 offset:{16*j}")
    a.e("v_lshlrev_b32 v8, 3, v3")
    a.e("v_lshl_add_u32 v8, v4, 11, v8")
    a.e("s_lshl_b32 s22, s15, 11")
    a.e("s_lshl_b32 s23, s16, 8")
    a.e("s_add_u32 s22, s22, s23")
    a.e(f"s_add_u32 s22, s22, {spout}")
    a.e("s_waitcnt lgkmcnt(0)")
    for j in range(8):
        a.e(f"v_add_f32 v{32+j}, v{32+j}, v{40+j}")
    for j in range(4):
        a.e(f"v_add_f32 v{32+j}, v{32+j}, v{36+j}")
    a.e("v_add_f32 v32, v32, v34")
    a.e("v_add_f32 v33, v33, v35")
    a.e("buffer_store_dwordx2 v[32:33], v8, s[8:11], s22 offen")
    a.label(ls)

def phase_op(a, layer):
    xin, xout, spout, of = XF[2 * layer], XF[2 * layer + 1], SP[2 * layer + 1], OF[layer]
    a.e("s_add_u32 s22, s15, s18")
    a.e("s_lshl_b32 s22, s22, 2")
    a.e("s_add_u32 s22, s22, s17")
    a.e("s_lshl_b32 s22, s22, 13")
    a.e(f"s_add_u32 s22, s22, {of}")
    a.e("s_lshl_b32 s23, s14, 13")
    for g in range(2):
        a.e(f"s_add_u32 m0, s23, {OS + 4096*g}")
        a.e(f"s_add_u32 s24, s22, {4096*g}")
        for j in range(4):
            a.vm_issue(("o", g), f"buffer_load_dwordx4 v2, s[8:11], s24 offen offset:{1024*j} lds")
    a.e(f"s_add_u32 s22, s19, {xin}")
    a.vm_issue("res", "buffer_load_dwordx4 v[48:51], v2, s[8:11], s22 offen")
    a.e("s_lshl_b32 s22, s17, 14")
    a.e(f"s_add_u32 s22, s22, {OS}")
    a.e("v_add_u32 v5, s22, v2")
    BB = [56, 64]
    def bread(s):
        a.e(f"ds_read_b128 {vr(BB[s%2],4)}, v5 offset:{1024*s}")
        a.e(f"ds_read_b128 {vr(BB[s%2]+4,4)}, v5 offset:{8192+1024*s}")
    for s in range(8):
        if s % 4 == 0:
            a.vm_wait(("o", s // 4))
            a.e("s_barrier")
            if s == 0: stamp(a, 6)
            bread(s)
        if s % 4 != 3:
            bread(s + 1)
            a.e("s_waitcnt lgkmcnt(2)")
        else:
            a.e("s_waitcnt lgkmcnt(0)")
        mfma(a, 16, 96 + 4 * s, BB[s % 2], None if s == 0 else 16)
        mfma(a, 32, 96 + 4 * s, BB[s % 2] + 4, None if s == 0 else 32)
    resid_epilogue(a, OS, OP_STL, xout, spout, False, True, 7)

def phase_f1(a, layer):
    xf, sp, hf = XF[2 * layer + 1], SP[2 * layer + 1], HF[layer]
    a.e("s_lshr_b32 s15, s13, 4")
    a.e("s_lshl_b32 s15, s15, 2")
    a.e("s_lshl_b32 s16, s12, 3")
    a.e("s_add_u32 s15, s15, s16")
    a.e("s_and_b32 s18, s14, 3")
    a.e("s_add_u32 s15, s15, s18")
    a.e("s_lshr_b32 s17, s14, 2")
    a.e("s_lshl_b32 s20, s15, 15")
    a.e("s_lshl_b32 s22, s17, 11")
    a.e("s_add_u32 s20, s20, s22")
    a.e(f"s_add_u32 s20, s20, {xf}")
    a.e("s_lshl_b32 s21, s18, 12")
    a.e(f"s_add_u32 s23, s21, {F1_B}")
    a.e("s_add_u32 s21, s23, s22")
    def bdma(c):
        a.e(f"s_add_u32 m0, s21, {(c % 4) * 16384}")
        a.e(f"s_add_u32 s29, s20, {c * 4096}")
        for j in range(2):
            a.vm_issue(("B", c), f"buffer_load_dwordx4 v2, s[8:11], s29 offen offset:{1024*j} lds")
    bdma(0)
    a.e("v_lshlrev_b32 v5, 3, v3")
    a.e("v_lshl_add_u32 v5, v4, 10, v5")
    a.e("s_lshl_b32 s19, s15, 11")
    a.e(f"s_add_u32 s19, s19, {sp}")
    bdma(1)
    stats_load(a, 120, 19, 5)
    bdma(2); bdma(3)
    a.e("v_add_u32 v7, s23, v2")
    a.e("s_mul_i32 s30, s15, 112")
    a.e("s_and_b32 s31, s13, 15")
    a.e("s_mul_i32 s31, s31, 7")
    a.e("s_add_u32 s30, s30, s31")
    a.e("s_lshl_b32 s31, s17, 2")
    a.e("s_add_u32 s30, s30, s31")
    a.e("s_lshl_b32 s30, s30, 10")
    a.e(f"s_add_u32 s30, s30, {hf}")
    lup, ljoin = f"f1{layer}_up", f"f1{layer}_join"
    a.e("s_cmp_lg_u32 s17, 0")
    a.e(f"s_cbranch_scc1 {lup}")
    vm0 = list(a.vm)
    for up in (0, 1):
        nt = 4 - up
        if up:
            a.label(lup)
        a.vm = list(vm0)
        if up == 0:
            a.e("s_lshl_b32 s28, s18, 12")
            a.e("v_mov_b32 v5, v2")
        else:
            a.e("s_mul_i32 s28, s18, 3072")
            a.e("s_add_u32 s28, s28, 16384")
            a.e("v_add_u32 v5, 4096, v2")
        a.e("s_add_u32 s27, s33, s28")
        a.e("v_add_u32 v6, 0x10000, v5")
        def adma(c):
            a.e(f"s_add_u32 m0, s28, {(c % 3) * ACH}")
            a.e(f"s_add_u32 s29, s27, {c * ACH}")
            for j in range(nt):
                a.vm_issue(("A", c), f"buffer_load_dwordx4 v2, s[8:11], s29 offen offset:{1024*j} lds")
        AB = [80, 96]
        BB = [112, 116]
        def rd(ks):
            if ks < 32:
                off = (ks // 4 % 3) * ACH + (ks % 4) * 7168
                a.e(f"ds_read_b128 {vr(BB[ks%2],4)}, v7 offset:{(ks // 4 % 4) * 16384 + (ks % 4) * 1024}")
            else:
                off = F1_EX
            for t in range(nt):
                o = off + 1024 * t
                a.e(f"ds_read_b128 {vr(AB[ks%2]+4*t,4)}, v{5 + o//65536} offset:{o%65536}")
        for ks in range(33):
            c = ks // 4
            if ks % 4 == 0 and ks < 32:
                a.vm_wait([("A", c), ("B", c)])
                a.e("s_barrier")
                if c == 0: stamp(a, 9)
                rd(ks)
                if c >= 1:
                    if c + 3 < 8: bdma(c + 3)
                    if c + 2 < 8: adma(c + 2)
            nxt = ks + 1
            if ks < 32 and (nxt % 4 != 0 or nxt == 32):
                rd(nxt)
                a.e(f"s_waitcnt lgkmcnt({nt + (1 if nxt < 32 else 0)})")
            else:
                a.e("s_waitcnt lgkmcnt(0)")
            if ks == 8:
                a.vm_wait("st")
                stats_sum(a, 120, 8)
                stats_finish(a, 120, 121, 128, 124, 8)
                a.e(f"v_mul_f32 v129, {f32(-LOG2E)}, v128")
                a.e("v_mul_f32 v130, v128, v128")
            breg = BB[ks % 2] if ks < 32 else 124
            for t in range(nt):
                mfma(a, 16 + 16 * t, AB[ks % 2] + 4 * t, breg, None if ks == 0 else 16 + 16 * t)
        a.e("s_nop 9")
        stamp(a, 10)
        for t in range(nt):
            g, u, tm = 16 + 16 * t, 24 + 16 * t, 132
            for j in range(8):
                a.e(f"v_mul_f32 v{tm+j}, v{g+j}, v129")
            for j in range(8):
                a.e(f"v_exp_f32 v{tm+j}, v{tm+j}")
            for j in range(8):
                a.e(f"v_mul_f32 v{u+j}, v{u+j}, v130")
            for j in range(8):
                a.e(f"v_add_f32 v{tm+j}, 1.0, v{tm+j}")
            for j in range(8):
                a.e(f"v_rcp_f32 v{tm+j}, v{tm+j}")
            a.e("s_nop 0")
            for j in range(8):
                a.e(f"v_mul_f32 v{g+j}, v{g+j}, v{tm+j}")
            for j in range(8):
                a.e(f"v_mul_f32 v{g+j}, v{g+j}, v{u+j}")
            for j in range(4):
                a.e(f"v_cvt_pk_bf16_f32 v{u+j}, v{g+2*j}, v{g+2*j+1}")
            a.e(f"buffer_store_dwordx4 {vr(u,4)}, v2, s[8:11], s30 offen offset:{1024*t}")
        if up == 0:
            a.e(f"s_branch {ljoin}")
    a.label(ljoin)
    a.vm_reset()

def phase_f2(a, layer, kvpre):
    final = layer == 1
    xin, hf = XF[2 * layer + 1], HF[layer]
    xout, spout = (XF[2 * layer + 2], SP[2 * layer + 2]) if not final else (0, 0)
    a.e("s_add_u32 s22, s15, s18")
    a.e("s_mul_i32 s22, s22, 112")
    a.e("s_mul_i32 s23, s17, 28")
    a.e("s_add_u32 s22, s22, s23")
    a.e("s_lshl_b32 s26, s22, 10")
    a.e(f"s_add_u32 s26, s26, {hf}")
    a.e("s_lshl_b32 s28, s14, 12")
    def dma(c):
        a.e(f"s_add_u32 m0, s28, {(c % 4) * 32768}")
        a.e(f"s_add_u32 s29, s26, {c * 4096}")
        for j in range(4):
            a.vm_issue(("c", c), f"buffer_load_dwordx4 v2, s[8:11], s29 offen offset:{1024*j} lds")
    dma(0); dma(1)
    a.e("s_lshl_b32 s22, s17, 13")
    a.e("v_add_u32 v5, s22, v2")
    a.e("v_add_u32 v6, 0x10000, v5")
    BB = [56, 64]
    def bread(s):
        off = (s // 4 % 4) * 32768 + (s % 4) * 1024
        b = 5 + off // 65536
        off %= 65536
        a.e(f"ds_read_b128 {vr(BB[s%2],4)}, v{b} offset:{off}")
        a.e(f"ds_read_b128 {vr(BB[s%2]+4,4)}, v{b} offset:{off+4096}")
    for s in range(28):
        c = s // 4
        if s % 4 == 0:
            a.vm_wait(("c", c))
            a.e("s_barrier")
            if c == 0: stamp(a, 12)
            bread(s)
            if c + 2 < 7:
                dma(c + 2)
            if c == 5:
                a.e(f"s_add_u32 s22, s19, {xin}")
                a.vm_issue("res", "buffer_load_dwordx4 v[48:51], v2, s[8:11], s22 offen")
                if kvpre: kvpre()
        if s % 4 != 3:
            bread(s + 1)
            a.e("s_waitcnt lgkmcnt(2)")
        else:
            a.e("s_waitcnt lgkmcnt(0)")
        mfma(a, 16, W2R + 4 * s, BB[s % 2], None if s == 0 else 16)
        mfma(a, 32, W2R + 4 * s, BB[s % 2] + 4, None if s == 0 else 32)
    resid_epilogue(a, 0, 131072, xout, spout, final, False, 13)

def gen_layer(a, layer):
    name = f"layer{layer}_kernel"
    final = layer == 1
    kstart(a, name)
    endl = f"layer{layer}_end"
    common_prologue(a, 256, endl, ["s_load_dwordx4 s[84:87], s[0:1], 72", "s_getreg_b32 s95, hwreg(HW_REG_XCC_ID, 0, 3)"])
    srd(a, 88, 86, 256)
    a.e("s_mov_b32 s86, 0x200000")
    a.e("s_mov_b32 s87, 0x20000")
    if GROUP_BY_BLOCK:
        a.e("s_lshr_b32 s12, s2, 5")
        a.e("s_and_b32 s13, s2, 31")
    else:
        a.e("s_and_b32 s12, s2, 7")
        a.e("s_lshr_b32 s13, s2, 3")
    a.e("s_mul_i32 s95, s95, 6")
    a.e("s_lshl_b32 s94, s12, 3")
    a.e("s_lshl_b32 s98, s12, 9")
    a.e(f"s_add_u32 s98, s98, {FLG + layer * 4096}")
    a.e("s_lshl_b32 s99, s13, 2")
    a.e("s_mov_b32 s92, 0")
    f1_ids(a)
    slow_path = phase_att(a, layer)
    xbar(a, layer, 0, pre=lambda: f1_pre(a, [0, 1], True))
    stamp(a, 5)
    resid_ids(a)
    phase_op(a, layer)
    xbar(a, layer, 1, pre=lambda: f1_pre(a, [2], False))
    stamp(a, 8)
    phase_f1(a, layer)
    resid_ids(a)
    xbar(a, layer, 2)
    stamp(a, 11)
    def kvpre():
        a.e("s_lshl_b32 s22, s14, 12")
        a.e(f"s_add_u32 s22, s22, {WKVF}")
        for kk in range(4):
            a.vm_issue("wkv", f"buffer_load_dwordx4 {vr(96+4*kk,4)}, v2, s[8:11], s22 offen offset:{1024*kk}")
        a.e(f"s_mov_b32 s22, {WKVF + 32*1024}")
        a.vm_issue("wkv", "buffer_load_dwordx4 v[112:115], v2, s[8:11], s22 offen")
    phase_f2(a, layer, None if final else kvpre)
    if not final:
        lk = f"layer{layer}_kv"
        a.e("s_cmp_lt_u32 s13, 8")
        a.e(f"s_cbranch_scc1 {lk}")
        xbar(a, layer, 3, poll=False, endl=endl)
        a.label(lk)
        a.uid += 1
        xbar(a, layer + 10, 3)
        stamp(a, 14)
        VT, PD = 0, 1024
        xf, sp, kvb = XF[2], SP[2], KVB[1]
        a.e("s_lshl_b32 s15, s12, 3")
        a.e("s_add_u32 s15, s15, s13")
        a.e("s_lshl_b32 s16, s15, 15")
        a.e("s_lshl_b32 s17, s14, 12")
        a.e("s_add_u32 s16, s16, s17")
        a.e(f"s_add_u32 s16, s16, {xf}")
        for kk in range(4):
            a.vm_issue(("x", kk), f"buffer_load_dwordx4 {vr(16+4*kk,4)}, v2, s[8:11], s16 offen offset:{1024*kk}")
        a.e("v_lshlrev_b32 v5, 3, v3")
        a.e("v_lshl_add_u32 v5, v4, 10, v5")
        a.e("s_lshl_b32 s18, s15, 11")
        a.e(f"s_add_u32 s18, s18, {sp}")
        stats_load(a, 120, 18, 5)
        for kk in range(4):
            a.vm_wait(("x", kk))
            mfma(a, 48, 96 + 4 * kk, 16 + 4 * kk, None if kk == 0 else 48)
        a.e(f"s_add_u32 s17, s17, {PD}")
        a.e("v_add_u32 v7, s17, v2")
        a.vm_wait("st")
        stats_sum(a, 120, 12)
        stats_finish(a, 120, 121, 8, 116, 12)
        for j in range(4):
            a.e(f"ds_write_b128 v7, {vr(48+4*j,4)} offset:{1024*j}")
        a.e("s_waitcnt lgkmcnt(0)")
        a.e("s_barrier")
        a.e("s_cmp_ge_u32 s14, 2")
        a.e(f"s_cbranch_scc1 {endl}")
        kv_fin(a, kvb, PD, VT, 8, 112, 116, 15, endl)
    kend(a, endl, len(kernels))
    slow_path()
    kernels.append((name, 256, 100))
    return (name, 256, 512, 163840)

def main(out):
    a = Asm()
    launches = [gen_prep(a), gen_layer(a, 0), gen_layer(a, 1)]
    hdr = open("cdna_kernels/" + NAME + ".s.ref").read().split("; Override")[0]
    o = hdr
    for (n, g, b, lds) in launches:
        o += f"; @launch kernel={n} grid=({g},1,1) block=({b},1,1) lds={lds}\n"
    o += '.amdgcn_target "amdgcn-amd-amdhsa--gfx950"\n.text\n'
    o += a.text()
    o += '.section .rodata,"a"\n'
    for (n, nv, ns) in kernels:
        o += f""".p2align 6
.amdhsa_kernel {n}
  .amdhsa_next_free_vgpr {nv}
  .amdhsa_next_free_sgpr {100 if DIAG else ns}
  .amdhsa_accum_offset {(nv+3)//4*4}
  .amdhsa_group_segment_fixed_size 0
  .amdhsa_kernarg_size 96
  .amdhsa_user_sgpr_count 2
  .amdhsa_user_sgpr_kernarg_segment_ptr 1
  .amdhsa_system_sgpr_workgroup_id_x 1
.end_amdhsa_kernel
"""
    open(out, "w").write(o)

if __name__ == "__main__":
    for fl in ("--diag", "--safe", "--byblock"):
        if fl in sys.argv:
            sys.argv.remove(fl)
            if fl == "--diag": DIAG = True
            if fl == "--safe": FORCE_SAFE = True
            if fl == "--byblock": GROUP_BY_BLOCK = True
    main(sys.argv[1] if len(sys.argv) > 1 else "cdna_kernels/" + NAME + ".s")
```
